```python
import torch

def _softmax(x, axis=-1):
    return torch.softmax(x, dim=axis)
def _gelu(x):
    return torch.nn.functional.gelu(x, approximate="tanh")
def _silu(x):
    return torch.nn.functional.silu(x)
def _sigmoid(x):
    return torch.sigmoid(x)
def _layernorm(x, axis=-1, eps=1e-5):
    m = x.mean(dim=axis, keepdim=True)
    v = x.var(dim=axis, keepdim=True, unbiased=False)
    return (x - m) / torch.sqrt(v + eps)
def _scatter_add(tgt, idx, src, axis=0):
    return tgt.clone().index_add_(axis, idx, src)
def _segment_sum(src, seg, n):
    out = torch.zeros((n,) + src.shape[1:], dtype=src.dtype)
    return out.index_add_(0, seg, src)
def _pad(x, pw):
    flat = tuple(v for pair in reversed(pw) for v in pair)
    return torch.nn.functional.pad(x, flat)

kernel_name = 'gated_mix__mha_block__sliding_local_dilated__prompt'

def setup_inputs():

    _w = (lambda a: (lambda t: t.to(torch.bfloat16) if t.is_floating_point() else t)(torch.as_tensor(a)))
    def _A_setup():
        B, S, D, H = 1, 2048, 512, 32
        return {
            "x": _w((lambda *s: torch.randn(*s, dtype=torch.bfloat16) * 0.05)(B, S, D)),
            "wqkv": _w((lambda *s: torch.randn(*s, dtype=torch.bfloat16) * 1.6)(D, 3 * D)),
            "wo": _w((lambda *s: torch.randn(*s, dtype=torch.bfloat16) * 0.1)(D, D)),
        }
    _A_in = _A_setup()

    def _B_setup():
        B, S, D = 1, 2048, 512
        return {
            "x": _w((lambda *s: torch.randn(*s, dtype=torch.bfloat16) * 0.05)(B, S, D)),
            "wqkv": _w((lambda *s: torch.randn(*s, dtype=torch.bfloat16) * 1.6)(D, 3 * D)),
            "wo": _w((lambda *s: torch.randn(*s, dtype=torch.bfloat16) * 0.05)(D, D)),
        }
    _B_in = _B_setup()

    return {
        "A_x": _A_in["x"],
        "A_wqkv": _A_in["wqkv"],
        "A_wo": _A_in["wo"],
        "B_x": _B_in["x"],
        "B_wqkv": _B_in["wqkv"],
        "B_wo": _B_in["wo"],
        "gate_w": _w((lambda *s: torch.randn(*s, dtype=torch.bfloat16) * 0.05)(512) * 16.0),
    }

def reference(A_x, A_wqkv, A_wo, B_x, B_wqkv, B_wo, gate_w):
    def _A_ref(x, wqkv, wo):
        B, S, D = x.shape
        H = 32
        Dh = D // H
        qkv = (lambda x, *d: x.permute(*d))((x @ wqkv).reshape(B, S, 3, H, Dh), 2, 0, 3, 1, 4)
        q, k, v = qkv[0], qkv[1], qkv[2]
        scores = torch.einsum("bhqd,bhkd->bhqk", q, k) * (Dh ** -0.5)
        p = _softmax(scores, axis=-1)
        o = torch.einsum("bhqk,bhkd->bhqd", p, v)
        return (lambda x, *d: x.permute(*d))(o, 0, 2, 1, 3).reshape(B, S, D) @ wo

    def _B_ref(x, wqkv, wo):
        B, S, D = x.shape
        H = 32; Dh = D // H
        W, dil = 8, 2
        qkv = (lambda x, *d: x.permute(*d))((x @ wqkv).reshape(B, S, 3, H, Dh), 2, 0, 3, 1, 4)
        q, k, v = qkv[0], qkv[1], qkv[2]
        scale = Dh ** -0.5
        pos = torch.arange(S)
        off = torch.arange(W) * dil
        idx = pos[:, None] - off[None, :]
        mask = idx >= 0
        idx_c = torch.where(mask, idx, 0).reshape(-1)
        kg = k[:, :, idx_c, :].reshape(B, H, S, W, Dh)
        vg = v[:, :, idx_c, :].reshape(B, H, S, W, Dh)
        logits = torch.einsum("bhsd,bhswd->bhsw", q, kg) * scale
        logits = torch.where(mask[None, None, :, :], logits, -1e9)
        attn = _softmax(logits, axis=-1)
        o = torch.einsum("bhsw,bhswd->bhsd", attn, vg)
        return (lambda x, *d: x.permute(*d))(o, 0, 2, 1, 3).reshape(B, S, D) @ wo

    x = A_x
    g = _sigmoid((x * gate_w).sum(-1, keepdims=True))
    a = _A_ref(x, A_wqkv, A_wo)
    b = _B_ref(x, B_wqkv, B_wo)
    return g * a + (1 - g) * b
```

```python
import re

TRANS = ("v_exp_f32", "v_log_f32", "v_rcp_f32", "v_rsq_f32", "v_sqrt_f32", "v_sin_f32", "v_cos_f32",
         "v_rcp_iflag_f32", "v_exp_f16", "v_rcp_f16")

_reg_re = re.compile(r"^(-?)(?:abs\()?\|?([vsa])(?:(\d+)|\[(\d+):(\d+)\])\|?\)?$")


def parse_reg(tok):
    tok = tok.strip()
    if tok in ("vcc", "exec", "m0", "scc"):
        return [(tok, 0)]
    if tok in ("vcc_lo", "vcc_hi"):
        return [("vcc", 0)]
    if tok in ("exec_lo", "exec_hi"):
        return [("exec", 0)]
    m = _reg_re.match(tok)
    if not m:
        return []
    k = m.group(2)
    if m.group(3) is not None:
        return [(k, int(m.group(3)))]
    return [(k, i) for i in range(int(m.group(4)), int(m.group(5)) + 1)]


class Ins:
    def __init__(self, text):
        self.text = text
        t = text.split(";")[0].strip()
        self.is_label = t.endswith(":")
        self.is_dir = t.startswith(".")
        parts = t.split(None, 1)
        self.op = parts[0] if parts else ""
        self.ops = []
        if len(parts) > 1 and not self.is_label and not self.is_dir:
            depth = 0
            cur = ""
            for ch in parts[1]:
                if ch == "[":
                    depth += 1
                if ch == "]":
                    depth -= 1
                if ch == "," and depth == 0:
                    self.ops.append(cur.strip())
                    cur = ""
                else:
                    cur += ch
            self.ops.append(cur.strip())
            last = self.ops[-1].split()
            self.mods = last[1:]
            self.ops[-1] = last[0] if last else ""
        else:
            self.mods = []
        self.classify()

    def classify(self):
        op = self.op
        op = re.sub(r"_(e32|e64|sdwa|dpp)$", "", op)
        self.base = op
        self.defs = []
        self.uses = []
        self.kind = "other"
        R = [parse_reg(o) for o in self.ops]
        if self.is_label or self.is_dir or not op:
            self.kind = "none"
            return
        if op.startswith("v_mfma") or op.startswith("v_smfmac"):
            self.kind = "mfma"
            self.defs = R[0]
            self.srcA, self.srcB = R[1], R[2]
            self.srcC = R[3] if len(R) > 3 else []
            self.uses = self.srcA + self.srcB + self.srcC
            self.passes = 8 if "32x32" in op else 4
            return
        if op.startswith("v_"):
            self.kind = "valu"
            self.trans = op in TRANS
            if op.startswith("v_cmp"):
                self.defs = R[0]
                self.uses = sum(R[1:], [])
                if op.startswith("v_cmpx"):
                    self.defs = self.defs + [("exec", 0)]
            elif op.startswith("v_permlane") and op.endswith("swap_b32"):
                self.defs = R[0] + R[1]
                self.uses = R[0] + R[1]
            elif op in ("v_add_co_u32", "v_sub_co_u32", "v_addc_co_u32", "v_subb_co_u32"):
                self.defs = R[0] + R[1]
                self.uses = sum(R[2:], [])
            elif op in ("v_fmac_f32", "v_dot2c_f32_bf16", "v_pk_fmac_f16"):
                self.defs = R[0]
                self.uses = sum(R, [])
            elif op == "v_cndmask_b32":
                self.defs = R[0]
                self.uses = sum(R[1:], [])
                if len(R) == 3:
                    self.uses += [("vcc", 0)]
            elif op == "v_nop":
                pass
            else:
                self.defs = R[0]
                self.uses = sum(R[1:], [])
            self.dpp = any(m.startswith(("quad_perm", "row_", "wave_")) for m in self.mods) or self.op.endswith("_dpp")
            return
        if op.startswith("buffer_") or op.startswith("global_"):
            self.kind = "vmem"
            self.is_store = "store" in op or "atomic" in op
            self.lds = "lds" in self.mods or "_lds_" in op
            if op.startswith("buffer_"):
                if self.lds:
                    self.uses = sum(R, []) + [("m0", 0)]
                elif self.is_store:
                    self.uses = sum(R, [])
                    self.data = R[0]
                else:
                    self.defs = R[0]
                    self.uses = sum(R[1:], [])
            else:
                if self.is_store:
                    self.uses = sum(R, [])
                    self.data = R[1]
                else:
                    self.defs = R[0]
                    self.uses = sum(R[1:], [])
            self.wide = self.is_store and ("x4" in op or "x3" in op)
            return
        if op.startswith("ds_"):
            self.kind = "ds"
            if op.startswith("ds_read") or op.startswith("ds_bpermute") or op.startswith("ds_permute") or op.startswith("ds_swizzle"):
                self.defs = R[0]
                self.uses = sum(R[1:], [])
            else:
                self.uses = sum(R, [])
            return
        if op.startswith("s_"):
            self.kind = "salu"
            if op in ("s_nop", "s_waitcnt", "s_barrier", "s_endpgm", "s_setprio", "s_branch", "s_sleep") or op.startswith("s_cbranch"):
                return
            if op.startswith("s_cmp"):
                self.uses = sum(R, [])
                return
            if op.startswith("s_load") or op.startswith("s_memtime") or op.startswith("s_memrealtime"):
                self.kind = "smem"
                self.defs = R[0]
                self.uses = sum(R[1:], [])
                return
            self.defs = R[0]
            self.uses = sum(R[1:], [])
            if "saveexec" in op:
                self.defs = self.defs + [("exec", 0)]
            return

    def states(self):
        if self.kind == "none":
            return 0
        if self.base == "s_nop":
            return int(self.ops[0], 0) + 1
        return 1


def vset(regs, kinds=("v", "a")):
    return set(r for r in regs if r[0] in kinds)


def check_hazards(instrs, name=""):
    probs = []
    real = [i for i in instrs if i.kind != "none"]
    n = len(real)
    for j, c in enumerate(real):
        dist = 0
        for i in range(j - 1, max(-1, j - 24), -1):
            p = real[i]
            need = 0
            why = ""
            pd = set(p.defs)
            cu = set(c.uses)
            cd = set(c.defs)
            if p.kind == "valu":
                vd = vset(pd)
                sd = set(r for r in pd if r[0] in ("s", "vcc"))
                if c.kind == "mfma" and vd & cu:
                    need, why = 2, "valu->mfma"
                if c.kind == "mfma" and ("exec", 0) in pd:
                    need, why = max(need, 4), "valu exec->mfma"
                if c.kind == "valu":
                    if p.trans and not c.trans and vd & (cu | cd):
                        need, why = max(need, 1), "trans->valu"
                    if c.base.startswith("v_permlane") and vd & cu:
                        need, why = max(need, 2), "valu->permlane"
                    if c.dpp and vd & cu:
                        need, why = max(need, 2), "valu->dpp"
                    if c.base in ("v_readfirstlane_b32", "v_readlane_b32") and vd & cu:
                        need, why = max(need, 1), "valu->readlane"
                    if sd & cu:
                        need, why = max(need, 2), "valu sgpr->valu"
                        if c.base in ("v_readlane_b32", "v_writelane_b32"):
                            need = max(need, 4)
                    if ("exec", 0) in pd and (c.dpp):
                        need, why = max(need, 5), "exec->dpp"
                    if ("exec", 0) in pd and c.base.startswith(("v_readlane", "v_readfirstlane", "v_permlane")):
                        need, why = max(need, 4), "cmpx->readlane"
                    if p.op.endswith("_sdwa") and vd & (cu | cd):
                        need, why = max(need, 1), "sdwa->valu"
                if p.trans and c.kind in ("vmem", "ds") and vd & cu:
                    need, why = max(need, 1), "trans->mem"
                if c.kind == "vmem" and sd & cu:
                    need, why = max(need, 5), "valu sgpr->vmem"
                if c.kind in ("salu", "smem") and sd & cu:
                    need, why = max(need, 1), "valu sgpr->salu(pad)"
            if p.kind == "mfma":
                big = {4: 8, 8: 12}[p.passes]
                ovl = {4: 6, 8: 10}[p.passes]
                war = {4: 3, 8: 7}[p.passes]
                if c.kind == "mfma":
                    if pd & (set(c.srcA) | set(c.srcB)):
                        need, why = max(need, big), "mfma D->A/B"
                    if pd & set(c.srcC):
                        if set(c.srcC) == pd and c.passes == p.passes:
                            pass
                        else:
                            need, why = max(need, ovl), "mfma D->C overlap"
                    elif pd & cd:
                        need, why = max(need, ovl), "mfma WAW"
                elif c.kind in ("valu", "vmem", "ds"):
                    if pd & (cu | cd):
                        need, why = max(need, big), "mfma D->valu/mem"
                    if c.kind in ("valu", "vmem", "ds") and set(p.srcC) & cd:
                        need, why = max(need, war), "mfma C WAR"
            if p.kind == "vmem" and getattr(p, "wide", False):
                if set(p.data) & cd:
                    need, why = max(need, 2 if c.kind == "valu" else 1), "store data WAR"
            if p.kind == "salu" and ("m0", 0) in pd and c.kind == "vmem" and c.lds:
                need, why = max(need, 1), "m0->lds dma"
            if dist < need:
                probs.append(f"{name}: need {need} have {dist} ({why}): [{p.text.strip()}] -> [{c.text.strip()}]")
            dist += p.states()
            if dist >= 20:
                break
    return probs


class Asm:
    def __init__(self):
        self.lines = []
        self.vm = []
        self.lg = []

    def e(self, text):
        for t in text.split("\n"):
            if t.strip():
                self.lines.append("    " + t.strip() if not t.strip().endswith(":") else t.strip())

    def c(self, text):
        self.lines.append("    ; " + text)

    def vmem(self, text, tag):
        self.e(text)
        self.vm.append(tag)

    def ds(self, text, tag):
        self.e(text)
        self.lg.append(tag)

    def _cnt(self, lst, tags):
        if isinstance(tags, str):
            tags = [tags]
        last = -1
        for i, t in enumerate(lst):
            if t in tags:
                last = i
        return last

    def wait(self, vm=None, lg=None, extra=""):
        parts = []
        if vm is not None:
            last = self._cnt(self.vm, vm)
            if last >= 0:
                n = len(self.vm) - 1 - last
                assert n <= 63, n
                parts.append(f"vmcnt({n})")
                self.vm = self.vm[last + 1:]
        if lg is not None:
            last = self._cnt(self.lg, lg)
            if last >= 0:
                n = len(self.lg) - 1 - last
                if n > 15:
                    n = 15
                    raise AssertionError("lgkmcnt overflow")
                parts.append(f"lgkmcnt({n})")
                self.lg = self.lg[last + 1:]
        if parts:
            self.e("s_waitcnt " + " ".join(parts))
            return True
        return False

    def wait_all(self):
        self.e("s_waitcnt vmcnt(0) lgkmcnt(0)")
        self.vm = []
        self.lg = []

    def nop(self, n):
        while n > 0:
            k = min(n, 16)
            self.e(f"s_nop {k-1}")
            n -= k

    def text(self):
        return "\n".join(self.lines) + "\n"

    def check(self, name=""):
        return check_hazards([Ins(l) for l in self.lines], name)


def descriptor(name, vgpr, sgpr, accum=None, denorm=False):
    if accum is None:
        accum = (vgpr + 3) // 4 * 4
    s = f""".section .rodata,"a"
.p2align 6
.amdhsa_kernel {name}
  .amdhsa_next_free_vgpr {vgpr}
  .amdhsa_next_free_sgpr {sgpr}
  .amdhsa_accum_offset {accum}
  .amdhsa_group_segment_fixed_size 0
  .amdhsa_kernarg_size 80
  .amdhsa_user_sgpr_count 2
  .amdhsa_user_sgpr_kernarg_segment_ptr 1
  .amdhsa_system_sgpr_workgroup_id_x 1
"""
    if denorm:
        s += "  .amdhsa_float_denorm_mode_32 3\n"
    s += ".end_amdhsa_kernel\n"
    return s


def header(name):
    return f""".text
.globl {name}
.p2align 8
.type {name},@function
{name}:
"""
```

```python
import math
import struct
import sys
import os
sys.path.insert(0, os.path.dirname(__file__))
from asmlib import Asm, descriptor, header

NAME = "gated_mix__mha_block__sliding_local_dilated__prompt"

BR_STRIDE = 0x600000
T_STRIDE = 0x200000
OF = 0xC00000
WOF = 0x1000000
GATE = 0x1100000
MASK = 0x1108000
WS_BYTES = 268435456


def f32bits(x):
    return struct.unpack("<I", struct.pack("<f", x))[0]


QSCALE = f32bits(0.25 * math.log2(math.e))
NEGBIG = f32bits(-1.0e30)
LOG2E = f32bits(math.log2(math.e))


def vr(b, n=4):
    return f"v[{b}:{b+n-1}]"


def srd(a, d, base, nbytes):
    a.e(f"s_mov_b32 s{d}, s{base}")
    a.e(f"s_mov_b32 s{d+1}, s{base+1}")
    a.e(f"s_mov_b32 s{d+2}, {nbytes:#x}")
    a.e(f"s_mov_b32 s{d+3}, 0x20000")


def gen_k1(opt):
    a = Asm()
    a.e("s_cmp_ge_u32 s2, 256")
    a.e("s_cbranch_scc1 K1_END")
    a.e("s_load_dwordx4 s[4:7], s[0:1], 0")
    a.e("s_load_dwordx2 s[8:9], s[0:1], 16")
    a.e("s_load_dwordx4 s[12:15], s[0:1], 32")
    a.e("s_load_dwordx2 s[16:17], s[0:1], 48")
    a.e("s_load_dwordx2 s[18:19], s[0:1], 72")
    a.e("s_and_b32 s47, s2, 7")
    a.e("s_lshr_b32 s48, s2, 3")
    if opt.get("k1map", 0) == 0:
        a.e("s_and_b32 s40, s47, 1")
        a.e("s_lshl_b32 s40, s40, 3")
        a.e("s_and_b32 s49, s48, 7")
        a.e("s_add_u32 s40, s40, s49")
        a.e("s_lshr_b32 s41, s47, 1")
        a.e("s_lshl_b32 s41, s41, 2")
        a.e("s_lshr_b32 s49, s48, 3")
        a.e("s_add_u32 s41, s41, s49")
        a.e("s_lshr_b32 s42, s41, 3")
        a.e("s_and_b32 s43, s41, 7")
    else:
        a.e("s_and_b32 s40, s48, 15")
        a.e("s_lshr_b32 s42, s48, 4")
        a.e("s_mov_b32 s43, s47")
    a.e("v_lshrrev_b32 v2, 6, v0")
    a.e("v_and_b32 v1, 63, v0")
    a.e("v_readfirstlane_b32 s44, v2")
    a.e("v_lshrrev_b32 v14, 3, v1")
    a.e("v_and_b32 v15, 7, v1")
    a.e("v_lshrrev_b32 v16, 4, v1")
    a.e("s_lshr_b32 s45, s44, 1")
    a.e("s_and_b32 s46, s44, 1")
    a.e("s_lshl_b32 s49, s40, 7")
    a.e("s_lshl_b32 s50, s44, 5")
    a.e("s_add_u32 s49, s49, s50")
    a.e("v_add_u32 v17, s49, v14")
    a.e("v_lshlrev_b32 v17, 10, v17")
    a.e("v_xor_b32 v18, v15, v16")
    a.e("v_xor_b32 v19, 4, v18")
    a.e("v_lshl_add_u32 v2, v18, 4, v17")
    a.e("v_lshl_add_u32 v3, v19, 4, v17")
    a.e("v_add_u32 v3, 0x2000, v3")
    a.e("v_add_u32 v4, 0x4000, v2")
    a.e("v_add_u32 v5, 0x4000, v3")
    a.e("s_lshl_b32 s50, s44, 4")
    a.e("v_add_u32 v17, s50, v14")
    a.e("v_mul_u32_u24 v17, 0xc00, v17")
    a.e("v_and_b32 v18, 1, v16")
    a.e("v_lshlrev_b32 v18, 2, v18")
    a.e("v_xor_b32 v18, v15, v18")
    a.e("v_lshl_add_u32 v6, v18, 4, v17")
    a.e("s_lshl_b32 s50, s43, 7")
    a.e("v_add_u32 v6, s50, v6")
    a.e("v_add_u32 v7, 0x6000, v6")
    a.e("s_lshl_b32 s50, s44, 12")
    a.e("s_lshl_b32 s51, s44, 11")
    a.e("s_add_u32 s51, s51, 0x10000")
    a.e("s_mov_b32 s48, 0")
    a.e("s_mov_b32 s49, 0")
    a.e("s_waitcnt lgkmcnt(0)")
    srd(a, 20, 4, 2048 * 512 * 2)
    a.e("s_cmp_eq_u32 s42, 0")
    a.e("s_cselect_b32 s24, s6, s12")
    a.e("s_cselect_b32 s25, s7, s13")
    a.e(f"s_mov_b32 s26, {512*1536*2:#x}")
    a.e("s_mov_b32 s27, 0x20000")

    def dma_list(c):
        st = c % 4
        L = []
        for i in range(4):
            L.append((f"s_add_u32 m0, s50, {st*16384 + i*1024:#x}",
                      f"buffer_load_dwordx4 v{2+i}, s[20:23], s48 offen lds"))
        for seg in range(3):
            for i in range(2):
                L.append((f"s_add_u32 m0, s51, {st*24576 + seg*8192 + i*1024 - seg*1024:#x}",
                          f"buffer_load_dwordx4 v{6+i}, s[24:27], s49 offen offset:{seg*1024} lds"))
        return L

    def emit_dma(c, item, filler=None):
        a.e(item[0])
        if filler:
            a.e(filler)
        else:
            a.e("s_nop 0")
        a.vmem(item[1], f"c{c}")

    def adv_dma():
        a.e("s_add_u32 s48, s48, 128")
        a.e(f"s_add_u32 s49, s49, {64*3072:#x}")

    for c in range(4):
        for it in dma_list(c):
            emit_dma(c, it)
        adv_dma()

    srd(a, 28, 18, WS_BYTES)
    srd(a, 36, 16, 1024)
    a.e("v_and_b32 v17, 31, v1")
    a.e("v_lshrrev_b32 v18, 5, v1")
    a.e("v_bfe_u32 v19, v1, 1, 3")
    a.e("v_xor_b32 v19, v19, v18")
    a.e("s_lshl_b32 s47, s45, 6")
    a.e("v_add_u32 v20, s47, v17")
    a.e("v_lshlrev_b32 v20, 7, v20")
    for ks in range(4):
        a.e(f"v_xor_b32 v21, {ks*2}, v19")
        a.e(f"v_lshl_add_u32 v{8+ks}, v21, 4, v20")
    a.e("v_bfe_u32 v21, v1, 2, 2")
    a.e("v_lshl_add_u32 v22, v18, 3, v21")
    a.e("v_lshlrev_b32 v22, 7, v22")
    a.e("v_bfe_u32 v23, v1, 4, 1")
    a.e("v_lshlrev_b32 v23, 1, v23")
    a.e("v_bfe_u32 v24, v1, 1, 1")
    a.e("v_add_u32 v23, v23, v24")
    a.e("s_lshl_b32 s47, s46, 2")
    a.e("v_add_u32 v23, s47, v23")
    a.e("v_bfe_u32 v24, v1, 3, 1")
    a.e("v_lshlrev_b32 v24, 2, v24")
    a.e("v_xor_b32 v23, v23, v24")
    a.e("v_lshl_add_u32 v22, v23, 4, v22")
    a.e("v_and_b32 v24, 1, v1")
    a.e("v_lshl_add_u32 v22, v24, 3, v22")
    a.e("v_add_u32 v12, 0x10000, v22")
    a.e(f"v_add_u32 v13, {0x10000 + 49152:#x}, v22")

    a.e("v_lshlrev_b32 v14, 4, v1")
    a.e("s_lshl_b32 s52, s2, 3")
    a.e("s_lshl_b32 s47, s44, 1")
    a.e("s_add_u32 s52, s52, s47")
    a.e("s_lshl_b32 s53, s52, 10")
    a.vmem("buffer_load_dwordx4 v[176:179], v14, s[20:23], s53 offen", "aux")
    a.vmem("buffer_load_dwordx4 v[180:183], v14, s[20:23], s53 offen offset:1024", "aux")
    a.vmem("buffer_load_dwordx4 v[184:187], v14, s[36:39], 0 offen", "aux")
    a.e("s_lshl_b32 s54, s2, 2")
    a.e("s_add_u32 s54, s54, s44")
    a.e("s_cmp_lt_u32 s54, 512")
    a.e("s_cselect_b32 s32, s8, s14")
    a.e("s_cselect_b32 s33, s9, s15")
    a.e(f"s_mov_b32 s34, {512*512*2:#x}")
    a.e("s_mov_b32 s35, 0x20000")
    a.e("s_and_b32 s55, s54, 31")
    a.e("s_lshl_b32 s55, s55, 14")
    a.e("s_bfe_u32 s56, s54, 0x40005")
    a.e("s_lshl_b32 s56, s56, 6")
    a.e("s_add_u32 s55, s55, s56")
    a.e("s_add_u32 s56, s55, 0x2000")
    a.e("v_bfe_u32 v21, v1, 2, 1")
    a.e("v_lshlrev_b32 v21, 4, v21")
    a.e("v_and_b32 v22, 3, v1")
    a.e("v_add_u32 v21, v21, v22")
    a.e("v_bfe_u32 v22, v1, 3, 2")
    a.e("v_lshl_add_u32 v21, v22, 2, v21")
    a.e("v_lshlrev_b32 v21, 1, v21")
    a.e("v_lshl_add_u32 v15, v18, 12, v21")
    for j in range(8):
        a.vmem(f"buffer_load_ushort v{188+j}, v15, s[32:35], s{55 + (j>>2)} offen offset:{(j&3)*1024}", "aux")

    FA, FB = 40, 60
    ACC = 80

    def frag_reads(c, ks, fs):
        st = c % 4
        L = []
        L.append(f"ds_read_b128 {vr(fs)}, v{8+ks} offset:{st*16384}")
        wb = 12 + (st >> 1)
        wo = (st & 1) * 24576 + ks * 2048
        L.append(f"ds_read_b64_tr_b16 {vr(fs+8,2)}, v{wb} offset:{wo}")
        L.append(f"ds_read_b64_tr_b16 {vr(fs+10,2)}, v{wb} offset:{wo+512}")
        L.append(f"ds_read_b128 {vr(fs+4)}, v{8+ks} offset:{st*16384+4096}")
        for seg in (1, 2):
            L.append(f"ds_read_b64_tr_b16 {vr(fs+8+seg*4,2)}, v{wb} offset:{wo+seg*8192}")
            L.append(f"ds_read_b64_tr_b16 {vr(fs+10+seg*4,2)}, v{wb} offset:{wo+seg*8192+512}")
        return L

    def mfmas(fs, first):
        L = []
        for seg in range(3):
            for rb in range(2):
                acc = ACC + (seg * 2 + rb) * 16
                x = vr(fs + rb * 4)
                w = vr(fs + 8 + seg * 4)
                cc = "0" if first else vr(acc, 16)
                if seg < 2:
                    L.append(f"v_mfma_f32_32x32x16_bf16 {vr(acc,16)}, {w}, {x}, {cc}")
                else:
                    L.append(f"v_mfma_f32_32x32x16_bf16 {vr(acc,16)}, {x}, {w}, {cc}")
        return L

    aux = []

    def A(t):
        aux.append(t)
    for j in range(4):
        A(f"v_lshl_or_b32 v{196+j}, v{189+2*j}, 16, v{188+2*j}")
    A("s_lshl_b32 s57, s54, 10")
    A(f"s_add_u32 s57, s57, {WOF:#x}")
    A(("VM", "buffer_store_dwordx4 v[196:199], v14, s[28:31], s57 offen", "st"))
    for d in range(4):
        A(f"v_lshlrev_b32 v{200+2*d}, 16, v{184+d}")
        A(f"v_and_b32 v{201+2*d}, 0xffff0000, v{184+d}")
    for row in range(2):
        xb = 176 + row * 4
        acc = 216 + row
        for d in range(4):
            A(f"v_lshlrev_b32 v208, 16, v{xb+d}")
            A(f"v_and_b32 v209, 0xffff0000, v{xb+d}")
            A(f"v_mul_f32 v208, v208, v{200+2*d}")
            A(f"v_mul_f32 v209, v209, v{201+2*d}")
            A("v_cvt_pk_bf16_f32 v210, v208, v209")
            A("v_lshlrev_b32 v208, 16, v210")
            A("v_and_b32 v209, 0xffff0000, v210")
            if d == 0:
                A(f"v_add_f32 v{acc}, v208, v209")
            else:
                A(f"v_add_f32 v{acc}, v{acc}, v208")
                A(f"v_add_f32 v{acc}, v{acc}, v209")
    for mod in ("quad_perm:[1,0,3,2]", "quad_perm:[2,3,0,1]", "row_half_mirror", "row_mirror"):
        A("s_nop 1")
        A(f"v_add_f32_dpp v216, v216, v216 {mod} row_mask:0xf bank_mask:0xf")
        A(f"v_add_f32_dpp v217, v217, v217 {mod} row_mask:0xf bank_mask:0xf")
    A("s_nop 1")
    for row in range(2):
        for q in range(4):
            A(f"v_readlane_b32 s{60+row*4+q}, v{216+row}, {q*16}")
    A("s_nop 1")
    A("v_cmp_eq_u32 vcc, 0, v1")
    A("v_mov_b32 v208, s60")
    A("v_add_f32 v208, s61, v208")
    A("v_add_f32 v208, s62, v208")
    A("v_add_f32 v208, s63, v208")
    A("v_mov_b32 v209, s64")
    A("v_add_f32 v209, s65, v209")
    A("v_add_f32 v209, s66, v209")
    A("v_add_f32 v209, s67, v209")
    A("v_cndmask_b32 v208, v209, v208, vcc")
    A("v_cvt_pk_bf16_f32 v208, v208, v208")
    A("v_and_b32 v208, 0xffff0000, v208")
    A(f"v_mul_f32 v208, {f32bits(-math.log2(math.e)):#x}, v208")
    A("v_exp_f32 v208, v208")
    A("s_nop 0")
    A("v_add_f32 v208, 1.0, v208")
    A("v_rcp_f32 v208, v208")
    A("s_nop 0")
    A("v_cvt_pk_bf16_f32 v208, v208, v208")
    A("v_and_b32 v208, 0xffff0000, v208")
    A("v_sub_f32 v209, 1.0, v208")
    A("v_cvt_pk_bf16_f32 v209, v209, v209")
    A("v_and_b32 v209, 0xffff0000, v209")
    A("v_lshlrev_b32 v210, 2, v1")
    A("s_lshl_b32 s57, s52, 2")
    A(f"s_add_u32 s57, s57, {GATE:#x}")
    A("s_add_u32 s58, s57, 0x2000")
    A("s_mov_b64 exec, 3")
    A(("VM", "buffer_store_dword v208, v210, s[28:31], s57 offen", "st"))
    A(("VM", "buffer_store_dword v209, v210, s[28:31], s58 offen", "st"))
    A("s_mov_b64 exec, -1")
    A("s_lshl_b32 s57, s54, 3")
    A("s_sub_u32 s58, s57, 48")
    A("s_cmp_lt_u32 s54, 4")
    A("s_cselect_b32 s57, s57, s58")
    A("s_cmp_lt_u32 s54, 6")
    A("s_cselect_b32 s57, s57, 1000")
    A("v_lshlrev_b32 v208, 2, v18")
    A("v_sub_u32 v208, v17, v208")
    A("v_subrev_u32 v208, s57, v208")
    A(f"v_mov_b32 v215, {NEGBIG:#x}")
    for e in range(4):
        A(f"v_subrev_u32 v209, {e}, v208")
        A("v_and_b32 v209, -15, v209")
        A("v_cmp_eq_u32 vcc, 0, v209")
        A("s_nop 1")
        A(f"v_cndmask_b32 v{220+e}, v215, 0, vcc")
    A("s_lshl_b32 s57, s54, 10")
    A(f"s_add_u32 s57, s57, {MASK:#x}")
    A("s_cmp_lt_u32 s54, 8")
    A("s_cselect_b64 exec, -1, 0")
    A(("VMX", "buffer_store_dwordx4 v[220:223], v14, s[28:31], s57 offen", "st"))
    A("s_mov_b64 exec, -1")

    def emit_aux(n):
        k = 0
        while aux and k < n:
            it = aux.pop(0)
            if isinstance(it, tuple):
                if it[0] == "VMX":
                    a.e("s_cbranch_execz K1_NOMASK")
                    a.e(it[1])
                    a.e("s_waitcnt vmcnt(0)")
                    a.e("K1_NOMASK:")
                else:
                    a.vmem(it[1], it[2])
            else:
                a.e(it)
                if it.startswith("s_mov_b64 exec, 3") or it.startswith("s_cselect_b64 exec") or it.startswith("s_nop") \
                        or it.startswith("v_cmp") or it.startswith("s_cmp"):
                    k -= 1
            if isinstance(it, tuple) and aux and (isinstance(aux[0], tuple) or aux[0].startswith("s_mov_b64 exec")):
                k -= 1
            k += 1

    a.wait(vm="c0")
    a.e("s_barrier")
    for r in frag_reads(0, 0, FA):
        a.ds(r, "f")
    pend = []
    step = 0
    for c in range(8):
        for ks in range(4):
            cur, nxt = (FA, FB) if step % 2 == 0 else (FB, FA)
            a.wait(lg="f")
            if ks == 3 and c < 7:
                a.wait(vm=f"c{c+1}")
                a.e("s_barrier")
                if c + 4 < 8:
                    pend = [(c + 4, it) for it in dma_list(c + 4)]
            M = mfmas(cur, step == 0)
            if ks < 3:
                R = frag_reads(c, ks + 1, nxt)
            elif c < 7:
                R = frag_reads(c + 1, 0, nxt)
            else:
                R = []
            ndma = {3: 3, 0: 3, 1: 2, 2: 2}[ks]
            if c == 3 and ks == 0:
                a.wait(vm="aux")
            for mi, m in enumerate(M):
                a.e(m)
                if mi < 3:
                    for r in R[mi * 3:(mi + 1) * 3]:
                        a.ds(r, "f")
                elif pend and ndma > 0:
                    cc, it = pend.pop(0)
                    emit_dma(cc, it)
                    ndma -= 1
                    if not pend:
                        adv_dma()
                if c >= 3 and (mi >= 3 or not R):
                    emit_aux(3)
            step += 1
    assert not pend
    emit_aux(1000)

    a.e("s_mul_i32 s57, s42, 0x600000")
    a.e("s_lshl_b32 s58, s43, 2")
    a.e("s_lshl_b32 s59, s46, 1")
    a.e("s_add_u32 s58, s58, s59")
    a.e("s_lshl_b32 s58, s58, 16")
    a.e("s_add_u32 s57, s57, s58")
    a.e("s_lshl_b32 s58, s40, 2")
    a.e("s_lshl_b32 s59, s45, 1")
    a.e("s_add_u32 s58, s58, s59")
    a.e("s_lshl_b32 s58, s58, 10")
    a.e("s_add_u32 s57, s57, s58")
    a.e("s_add_u32 s58, s57, 0x10000")
    a.e(f"s_add_u32 s59, s57, {T_STRIDE:#x}")
    a.e(f"s_add_u32 s60, s58, {T_STRIDE:#x}")
    a.e(f"s_add_u32 s61, s57, {2*T_STRIDE:#x}")
    a.e("v_bfe_u32 v21, v1, 4, 1")
    a.e("v_lshlrev_b32 v21, 16, v21")
    a.e("v_lshl_add_u32 v21, v18, 8, v21")
    a.e("v_and_b32 v22, 15, v1")
    a.e("v_lshl_add_u32 v21, v22, 4, v21")
    a.e(f"s_mov_b32 s62, {QSCALE:#x}")
    a.nop(4)
    tmp = [40, 44, 48, 52, 56, 60, 64, 68, 72, 76]
    ti = 0
    for seg in range(3):
        for rb in range(2):
            acc = ACC + (seg * 2 + rb) * 16
            for half in range(2):
                t = tmp[ti % len(tmp)]
                ti += 1
                b = acc + half * 8
                if seg == 0:
                    for r in range(8):
                        a.e(f"v_mul_f32 v{b+r}, s62, v{b+r}")
                for r in range(4):
                    a.e(f"v_cvt_pk_bf16_f32 v{t+r}, v{b+2*r}, v{b+2*r+1}")
                if seg < 2:
                    a.vmem(f"buffer_store_dwordx4 {vr(t)}, v14, s[28:31], s{57+seg*2+half} offen offset:{rb*1024}", "st")
                else:
                    a.vmem(f"buffer_store_dwordx4 {vr(t)}, v21, s[28:31], s61 offen offset:{rb*1024+half*512}", "st")
    a.e("K1_END:")
    a.e("s_endpgm")
    return a, 224, 72


def gen_k2(opt):
    a = Asm()
    NQ = 4
    NKT = 16
    a.e("s_cmp_ge_u32 s2, 256")
    a.e("s_cbranch_scc1 K2_END")
    a.e("s_load_dwordx2 s[18:19], s[0:1], 72")
    a.e("s_and_b32 s40, s2, 7")
    a.e("s_lshr_b32 s41, s2, 3")
    a.e("s_lshl_b32 s40, s40, 2")
    a.e("s_and_b32 s42, s41, 3")
    a.e("s_add_u32 s40, s40, s42")
    a.e("s_lshr_b32 s41, s41, 2")
    a.e("v_lshrrev_b32 v2, 6, v0")
    a.e("v_and_b32 v1, 63, v0")
    a.e("v_readfirstlane_b32 s44, v2")
    a.e("v_lshlrev_b32 v2, 4, v1")
    a.e("v_lshrrev_b32 v4, 5, v1")
    a.e("v_and_b32 v3, 15, v1")
    a.e("v_lshlrev_b32 v3, 4, v3")
    a.e("v_lshl_add_u32 v3, v4, 8, v3")
    a.e("s_and_b32 s45, s44, 1")
    a.e("s_lshr_b32 s46, s44, 1")
    a.e("s_lshl_b32 s47, s40, 16")
    a.e("s_lshl_b32 s48, s41, 13")
    a.e("s_lshl_b32 s49, s45, 12")
    a.e("s_add_u32 s48, s48, s47")
    a.e("s_add_u32 s49, s49, s48")
    a.e("s_lshl_b32 s50, s46, 14")
    a.e("s_add_u32 s50, s50, s47")
    a.e(f"s_add_u32 s52, s50, {T_STRIDE:#x}")
    a.e(f"s_add_u32 s56, s50, {2*T_STRIDE:#x}")
    for i in range(1, 4):
        a.e(f"s_add_u32 s{52+i}, s52, {i*4096}")
        a.e(f"s_add_u32 s{56+i}, s56, {i*4096}")
    a.e("s_mov_b32 s60, 0x0000ffff")
    a.e("s_mov_b32 s61, 0x0000ffff")
    a.e("s_waitcnt lgkmcnt(0)")
    srd(a, 28, 18, WS_BYTES)

    Q = 8
    KV = 24
    NB = 3
    P = 60
    MISC = 76
    S = 96
    C = 128
    O = 192

    def kb(kt):
        return KV + (kt % NB) * 12

    def load_kv(kt):
        b = kb(kt)
        off = (kt & 3) * 1024
        a.vmem(f"buffer_load_dwordx4 {vr(b)}, v2, s[28:31], s{52+(kt>>2)} offen offset:{off}", f"k{kt}")
        a.e("s_mov_b64 exec, s[60:61]")
        a.vmem(f"buffer_load_dwordx4 {vr(b+4)}, v3, s[28:31], s{56+(kt>>2)} offen offset:{off}", f"v{kt}")
        a.vmem(f"buffer_load_dwordx4 {vr(b+8)}, v3, s[28:31], s{56+(kt>>2)} offen offset:{off+512}", f"v{kt}")
        a.e("s_mov_b64 exec, -1")

    for j in range(NQ):
        a.vmem(f"buffer_load_dwordx4 {vr(Q+4*j)}, v2, s[28:31], s49 offen offset:{j*1024}", "q")
    a.e("v_mov_b32 v5, 0x3f803f80")
    for b in range(NB):
        for r in range(8):
            a.e(f"v_mov_b32 v{KV+b*12+4+r}, v5")
    a.e("s_mov_b32 s62, 0")
    a.e("K2_RESTART:")
    load_kv(0)
    load_kv(1)
    a.e("s_cmp_lg_u32 s62, 0")
    a.e("s_cbranch_scc1 K2_MAIN")
    a.e("v_cmp_gt_u32 vcc, 32, v1")
    a.e("v_mov_b32 v81, 0")
    a.e("v_mov_b32 v82, 0")
    a.e("v_mov_b32 v83, 0")
    a.e("v_mov_b32 v84, 0x3f80")
    a.e("v_cndmask_b32 v80, 0, v84, vcc")
    a.e("v_mov_b32 v77, 0")
    a.e("v_mov_b32 v78, 0")
    a.e("v_mov_b32 v79, 0")
    a.e("v_mov_b32 v85, 0")
    a.e("v_mov_b32 v86, 0")
    a.e("v_mov_b32 v87, 0")
    a.wait(vm=["q", "k0"])
    for j in range(NQ):
        a.e(f"v_mfma_f32_32x32x16_bf16 {vr(O+16*j,16)}, {vr(kb(0))}, {vr(Q+4*j)}, 0")
    a.nop(9)
    for j in range(NQ):
        o = O + 16 * j
        t = 88 + j
        a.e(f"v_max3_f32 v{t}, v{o}, v{o+1}, v{o+2}")
        for r in range(3, 15, 2):
            a.e(f"v_max3_f32 v{t}, v{t}, v{o+r}, v{o+r+1}")
        a.e(f"v_max_f32 v{t}, v{t}, v{o+15}")
        bb = 76 if j % 2 == 0 else 84
        a.e(f"v_cvt_pk_bf16_f32 v{bb}, -v{t}, 0")
        a.nop(2)
        a.e(f"v_mfma_f32_32x32x16_bf16 {vr(C+16*j,16)}, v[80:83], {vr(bb)}, 0")
    a.nop(10)
    a.e("K2_MAIN:")
    assert len(a.vm) == 5
    a.e("s_waitcnt vmcnt(5)")

    tiles = [(kt, j) for kt in range(NKT) for j in range(NQ)]

    def qk(n):
        kt, j = tiles[n]
        return f"v_mfma_f32_32x32x16_bf16 {vr(S+16*(n%2),16)}, {vr(kb(kt))}, {vr(Q+4*j)}, {vr(C+16*j,16)}"

    def pv(n, m):
        kt, j = tiles[n]
        cc = "0" if (kt == 0 and m == 0) else vr(O + 16 * j, 16)
        return f"v_mfma_f32_32x32x16_bf16 {vr(O+16*j,16)}, {vr(kb(kt)+4+4*m)}, {vr(P+8*(n%2)+4*m)}, {cc}"

    prio_at = {0: 3, 32: 2, 52: 1, 61: 0} if opt.get("prio", 1) else {}
    a.e(qk(0))
    a.nop(12)
    NT = len(tiles)
    for n in range(NT):
        kt, j = tiles[n]
        s = S + 16 * (n % 2)
        p = P + 8 * (n % 2)
        if n in prio_at:
            a.e(f"s_setprio {prio_at[n]}")
        def ex(i):
            a.e(f"v_exp_f32 v{s+i}, v{s+i}")

        def cv(i):
            a.e(f"v_cvt_pk_bf16_f32 v{p+i}, v{s+2*i}, v{s+2*i+1}")
        ex(0); ex(1)
        if n > 0:
            a.e(pv(n - 1, 1))
        ex(2); ex(3); cv(0); ex(4); ex(5); cv(1)
        if n + 1 < NT:
            if tiles[n + 1][1] == 0:
                a.wait(vm=f"k{tiles[n+1][0]}")
            a.e(qk(n + 1))
        ex(6); ex(7); cv(2); ex(8); ex(9); cv(3)
        if j == 1 and kt + 2 < NKT:
            load_kv(kt + 2)
        ex(10); ex(11)
        if j == 0:
            a.wait(vm=f"v{kt}")
        a.e(pv(n, 0))
        cv(4); ex(12); ex(13); cv(5); ex(14); ex(15); cv(6)
        a.e("s_nop 0") if False else None
        cv(7)
    a.nop(2)
    a.e(pv(NT - 1, 1))
    a.nop(12)
    a.e("s_cmp_lg_u32 s62, 0")
    a.e("s_cbranch_scc1 K2_COMBINE")
    a.e(f"v_mov_b32 v84, {f32bits(2.0**100):#x}")
    a.e("v_mov_b32 v85, 0")
    a.e("s_mov_b64 s[64:65], -1")
    for j in range(NQ):
        o = O + 16 * j
        for r in range(8):
            a.e(f"v_fma_f32 v85, v{o+r}, 0, v85")
        a.e(f"v_cmp_lt_f32 vcc, v{o+8}, v84")
        a.e("s_nop 0")
        a.e("s_and_b64 s[64:65], s[64:65], vcc")
    a.e("v_cmp_o_f32 vcc, v85, v85")
    a.e("s_nop 0")
    a.e("s_and_b64 s[64:65], s[64:65], vcc")
    a.e("s_cmp_eq_u64 s[64:65], -1")
    a.e("s_cbranch_scc1 K2_COMBINE")
    a.e(f"v_mov_b32 v88, {NEGBIG:#x}")
    for j in range(1, NQ):
        a.e(f"v_mov_b32 v{88+j}, v88")
    a.e("s_mov_b32 s63, 0")
    a.e("K2_FB_LOOP:")
    a.e("s_add_u32 s66, s52, s63")
    a.e(f"buffer_load_dwordx4 {vr(kb(0))}, v2, s[28:31], s66 offen")
    a.e("s_waitcnt vmcnt(0)")
    for j in range(NQ):
        a.e(f"v_mfma_f32_32x32x16_bf16 {vr(O+16*j,16)}, {vr(kb(0))}, {vr(Q+4*j)}, 0")
    a.nop(12)
    for j in range(NQ):
        o = O + 16 * j
        for r in range(0, 16, 2):
            a.e(f"v_max3_f32 v{88+j}, v{88+j}, v{o+r}, v{o+r+1}")
    a.e("s_add_u32 s63, s63, 1024")
    a.e(f"s_cmp_lt_u32 s63, {NKT*1024}")
    a.e("s_cbranch_scc1 K2_FB_LOOP")
    for j in range(NQ):
        a.e(f"v_mov_b32 v84, v{88+j}")
        a.nop(2)
        a.e(f"v_permlane32_swap_b32 v84, v{88+j}")
        a.nop(2)
        a.e(f"v_max_f32 v84, v84, v{88+j}")
        for r in range(16):
            a.e(f"v_sub_f32 v{C+16*j+r}, 0, v84")
    a.e("s_mov_b32 s62, 1")
    a.e("s_branch K2_RESTART")

    a.e("K2_COMBINE:")
    a.vm = []
    LQ, LKC, LKP, LV0, LV1, LVP = 8, 12, 16, 28, 32, 40
    MC = 128
    for j in range(NQ):
        a.e(f"v_mov_b32 v{O+16*j+9}, v{C+16*j}")
    a.e("s_lshl_b32 s66, s44, 10")
    a.e("s_add_u32 s66, s66, s48")
    a.e(f"s_add_u32 s66, s66, {BR_STRIDE:#x}")
    a.e("s_lshl_b32 s67, s41, 3")
    a.e("s_add_u32 s67, s67, s44")
    a.e("s_cmp_eq_u32 s67, 0")
    a.e("s_cselect_b32 s68, 0, 1024")
    a.e("s_cselect_b32 s69, 2048, 0")
    a.e(f"s_add_u32 s69, s69, {MASK+4096:#x}")
    a.e(f"s_add_u32 s70, s66, {T_STRIDE:#x}")
    a.e("s_sub_u32 s71, s70, s68")
    a.e(f"s_add_u32 s72, s66, {2*T_STRIDE:#x}")
    a.e("s_sub_u32 s73, s72, s68")
    a.e(f"s_mov_b32 s74, {MASK:#x}")
    a.vmem(f"buffer_load_dwordx4 {vr(LQ)}, v2, s[28:31], s66 offen", "l")
    a.vmem(f"buffer_load_dwordx4 {vr(LKC)}, v2, s[28:31], s70 offen", "l")
    a.vmem(f"buffer_load_dwordx4 {vr(LKP)}, v2, s[28:31], s71 offen", "l")
    for g in range(4):
        a.vmem(f"buffer_load_dwordx4 {vr(MC+4*g)}, v2, s[28:31], s74 offen offset:{g*1024}", "l")
    for g in range(2):
        a.vmem(f"buffer_load_dwordx4 {vr(MC+24+4*g)}, v2, s[28:31], s69 offen offset:{g*1024}", "l")
    a.e("s_mov_b64 exec, s[60:61]")
    a.vmem(f"buffer_load_dwordx4 {vr(LV0)}, v3, s[28:31], s72 offen", "lv")
    a.vmem(f"buffer_load_dwordx4 {vr(LV1)}, v3, s[28:31], s72 offen offset:512", "lv")
    a.vmem(f"buffer_load_dwordx4 {vr(LVP)}, v3, s[28:31], s73 offen offset:512", "lv")
    a.e("s_mov_b64 exec, -1")
    a.e("s_mul_i32 s75, s44, 10240")
    a.e("v_add_u32 v6, s75, v2")
    a.e("v_lshlrev_b32 v7, 3, v1")
    a.e("v_add_u32 v7, s75, v7")
    for j in range(NQ):
        o = O + 16 * j
        a.ds(f"ds_write_b128 v6, {vr(o)} offset:{j*2560}", "w")
        a.ds(f"ds_write_b128 v6, {vr(o+4)} offset:{j*2560+1024}", "w")
        a.ds(f"ds_write_b64 v7, {vr(o+8,2)} offset:{j*2560+2048}", "w")
    a.e("s_mul_i32 s75, s45, 10240")
    a.e("s_mul_i32 s76, s46, 2560")
    a.e("s_add_u32 s75, s75, s76")
    a.e("v_add_u32 v6, s75, v2")
    a.e("v_lshlrev_b32 v7, 3, v1")
    a.e("v_add_u32 v7, s75, v7")
    a.wait(lg="w")
    a.e("s_barrier")
    R = 192
    for i in range(4):
        o = R + 16 * i
        a.ds(f"ds_read_b64 {vr(o+8,2)}, v7 offset:{i*20480+2048}", "r0")
    for i in range(4):
        o = R + 16 * i
        a.ds(f"ds_read_b128 {vr(o)}, v6 offset:{i*20480}", f"r{i+1}")
        a.ds(f"ds_read_b128 {vr(o+4)}, v6 offset:{i*20480+1024}", f"r{i+1}")
    a.wait(lg="r0")
    a.e(f"v_min3_f32 v84, v{R+9}, v{R+16+9}, v{R+32+9}")
    a.e(f"v_min_f32 v84, v84, v{R+48+9}")
    for i in range(4):
        a.e(f"v_sub_f32 v{88+i}, v84, v{R+16*i+9}")
    for i in range(4):
        a.e(f"v_exp_f32 v{88+i}, v{88+i}")
    a.e("s_nop 0")
    a.e(f"v_mul_f32 v85, v88, v{R+8}")
    for i in range(1, 4):
        a.e(f"v_fmac_f32 v85, v{88+i}, v{R+16*i+8}")
    a.e("v_rcp_f32 v85, v85")
    a.e("s_nop 0")
    for i in range(4):
        a.e(f"v_mul_f32 v{88+i}, v{88+i}, v85")
    for i in range(4):
        a.wait(lg=f"r{i+1}")
        for r in range(8):
            if i == 0:
                a.e(f"v_mul_f32 v{96+r}, v88, v{R+r}")
            else:
                a.e(f"v_fmac_f32 v{96+r}, v{88+i}, v{R+16*i+r}")
    for r in range(4):
        a.e(f"v_cvt_pk_bf16_f32 v{104+r}, v{96+2*r}, v{97+2*r}")
    a.e("s_lshl_b32 s75, s41, 3")
    a.e("s_lshl_b32 s76, s45, 2")
    a.e("s_add_u32 s75, s75, s76")
    a.e("s_add_u32 s75, s75, s46")
    a.e("s_lshl_b32 s75, s75, 6")
    a.e("s_add_u32 s75, s75, s40")
    a.e("s_lshl_b32 s75, s75, 10")
    a.e(f"s_add_u32 s75, s75, {OF:#x}")
    a.vmem("buffer_store_dwordx4 v[104:107], v2, s[28:31], s75 offen", "st")

    SC, SP = 192, 208
    a.wait(vm="l")
    a.e(f"v_mfma_f32_32x32x16_bf16 {vr(SC,16)}, {vr(LKC)}, {vr(LQ)}, {vr(MC,16)}")
    a.e(f"v_mfma_f32_32x32x16_bf16 {vr(SP,16)}, {vr(LKP)}, {vr(LQ)}, {vr(MC+16,16)}")
    a.nop(11)
    vals = [SC + r for r in range(16)] + [SP + 8 + r for r in range(8)]
    a.e(f"v_max3_f32 v84, v{vals[0]}, v{vals[1]}, v{vals[2]}")
    for i in range(3, 23, 2):
        a.e(f"v_max3_f32 v84, v84, v{vals[i]}, v{vals[i+1]}")
    a.e(f"v_max_f32 v84, v84, v{vals[23]}")
    a.e("v_mov_b32 v85, v84")
    a.nop(2)
    a.e("v_permlane32_swap_b32 v84, v85")
    a.nop(2)
    a.e("v_max_f32 v84, v84, v85")
    for v in vals:
        a.e(f"v_sub_f32 v{v}, v{v}, v84")
    for v in vals:
        a.e(f"v_exp_f32 v{v}, v{v}")
    a.e("s_nop 0")
    LP = 60
    for i in range(12):
        a.e(f"v_cvt_pk_bf16_f32 v{LP+i}, v{vals[2*i]}, v{vals[2*i+1]}")
    a.wait(vm="lv")
    a.nop(1)
    LO = 224
    a.e(f"v_mfma_f32_32x32x16_bf16 {vr(LO,16)}, {vr(LV0)}, {vr(LP)}, 0")
    a.e(f"v_mfma_f32_32x32x16_bf16 {vr(LO,16)}, {vr(LV1)}, {vr(LP+4)}, {vr(LO,16)}")
    a.e(f"v_mfma_f32_32x32x16_bf16 {vr(LO,16)}, {vr(LVP)}, {vr(LP+8)}, {vr(LO,16)}")
    a.e("s_lshl_b32 s75, s67, 6")
    a.e("s_add_u32 s75, s75, s40")
    a.e("s_add_u32 s75, s75, 32")
    a.e("s_lshl_b32 s75, s75, 10")
    a.e(f"s_add_u32 s75, s75, {OF:#x}")
    a.nop(7)
    a.e(f"v_rcp_f32 v85, v{LO+8}")
    a.e("s_nop 0")
    for r in range(8):
        a.e(f"v_mul_f32 v{LO+r}, v85, v{LO+r}")
    for r in range(4):
        a.e(f"v_cvt_pk_bf16_f32 v{108+r}, v{LO+2*r}, v{LO+2*r+1}")
    a.vmem("buffer_store_dwordx4 v[108:111], v2, s[28:31], s75 offen", "st")
    a.e("K2_END:")
    a.e("s_endpgm")
    return a, 256, 84


def gen_k3(opt):
    a = Asm()
    a.e("s_cmp_ge_u32 s2, 256")
    a.e("s_cbranch_scc1 K3_END")
    a.e("s_load_dwordx2 s[16:17], s[0:1], 56")
    a.e("s_load_dwordx2 s[18:19], s[0:1], 72")
    a.e("s_and_b32 s40, s2, 7")
    a.e("s_lshr_b32 s41, s2, 3")
    a.e("s_lshl_b32 s40, s40, 2")
    a.e("s_and_b32 s42, s41, 3")
    a.e("s_add_u32 s40, s40, s42")
    a.e("s_lshr_b32 s41, s41, 2")
    a.e("v_lshrrev_b32 v2, 6, v0")
    a.e("v_and_b32 v1, 63, v0")
    a.e("v_readfirstlane_b32 s44, v2")
    a.e("v_lshlrev_b32 v2, 4, v1")
    a.e("s_nop 1")
    a.e("s_lshr_b32 s45, s44, 1")
    a.e("s_and_b32 s46, s44, 1")
    a.e("s_lshl_b32 s47, s40, 1")
    a.e("s_add_u32 s48, s47, s45")
    a.e("s_xor_b32 s49, s48, 1")
    a.e("s_lshl_b32 s50, s45, 5")
    a.e("s_lshl_b32 s51, s46, 4")
    a.e("s_add_u32 s50, s50, s51")
    a.e("s_lshl_b32 s52, s48, 6")
    a.e("s_add_u32 s52, s52, s50")
    a.e("s_lshl_b32 s52, s52, 10")
    a.e(f"s_add_u32 s52, s52, {OF:#x}")
    a.e("s_lshl_b32 s53, s49, 6")
    a.e("s_add_u32 s53, s53, s50")
    a.e("s_lshl_b32 s53, s53, 10")
    a.e(f"s_add_u32 s53, s53, {OF:#x}")
    a.e("s_lshl_b32 s47, s41, 1")
    a.e("s_add_u32 s54, s47, s46")
    a.e("s_xor_b32 s55, s54, 1")
    a.e("s_lshl_b32 s47, s45, 4")
    a.e("s_add_u32 s56, s54, s47")
    a.e("s_lshl_b32 s56, s56, 5")
    a.e("s_add_u32 s56, s56, s51")
    a.e("s_lshl_b32 s56, s56, 10")
    a.e(f"s_add_u32 s56, s56, {WOF:#x}")
    a.e("s_add_u32 s57, s55, s47")
    a.e("s_lshl_b32 s57, s57, 5")
    a.e("s_add_u32 s57, s57, s51")
    a.e("s_lshl_b32 s57, s57, 10")
    a.e(f"s_add_u32 s57, s57, {WOF:#x}")
    a.e("s_waitcnt lgkmcnt(0)")
    srd(a, 28, 18, WS_BYTES)
    srd(a, 32, 16, 2048 * 512 * 2)
    a.e("v_and_b32 v3, 31, v1")
    a.e("v_lshlrev_b32 v4, 2, v3")
    a.e("s_lshl_b32 s58, s48, 7")
    a.e(f"s_add_u32 s58, s58, {GATE:#x}")
    a.e("s_add_u32 s59, s58, 0x2000")

    ACC = 8
    def fr(ks, idx):
        n = ks * 16 + idx * 4
        if ks < 11:
            b = 72 + n
            return f"v[{b}:{b+3}]"
        b = n - 11 * 16
        return f"a[{b}:{b+3}]"

    def loads(ks):
        off = (ks & 3) * 1024
        for idx, sreg in enumerate((52, 56, 53, 57)):
            a.vmem(f"buffer_load_dwordx4 {fr(ks, idx)}, v2, s[28:31], s{sreg} offen offset:{off}", f"k{ks}")
        if ks & 3 == 3:
            for sreg in (52, 53, 56, 57):
                a.e(f"s_add_u32 s{sreg}, s{sreg}, 4096")

    def mm(ks):
        for i in range(2):
            for j in range(2):
                acc = ACC + (i * 2 + j) * 16
                cc = "0" if ks == 0 else vr(acc, 16)
                a.e(f"v_mfma_f32_32x32x16_bf16 {vr(acc,16)}, {fr(ks, 1+2*j)}, {fr(ks, 2*i)}, {cc}")

    PRE = 15
    for ks in range(PRE):
        loads(ks)
    a.vmem("buffer_load_dword v5, v4, s[28:31], s58 offen", "g")
    a.vmem("buffer_load_dword v6, v4, s[28:31], s59 offen", "g")
    for ks in range(16):
        a.wait(vm=f"k{ks}")
        mm(ks)
        if ks + PRE < 16:
            loads(ks + PRE)
    a.nop(8)
    for t in range(1, 4):
        a.e(f"s_xor_b32 s60, s44, {t}")
        a.e("s_mul_i32 s60, s60, 12288")
        a.e(f"v_add_u32 v7, s60, v2")
        for g in range(4):
            a.ds(f"ds_write_b128 v7, {vr(ACC+t*16+g*4)} offset:{(t-1)*4096+g*1024}", "w")
    a.e("s_mul_i32 s60, s44, 12288")
    a.e("v_add_u32 v7, s60, v2")
    a.wait(lg="w")
    a.e("s_barrier")
    RB = 72
    for t in range(1, 4):
        for g in range(4):
            a.ds(f"ds_read_b128 {vr(RB+(t-1)*16+g*4)}, v7 offset:{(t-1)*4096+g*1024}", f"r{t}")
    a.wait(vm="g")
    a.e("s_cmp_eq_u32 s45, 0")
    a.e("s_cselect_b64 vcc, -1, 0")
    a.e("v_cndmask_b32 v120, v6, v5, vcc")
    a.e("v_cndmask_b32 v121, v5, v6, vcc")
    a.wait(lg="r1")
    for r in range(16):
        a.e(f"v_add_f32 v{ACC+r}, v{ACC+r}, v{RB+r}")
    a.wait(lg="r3")
    for r in range(16):
        a.e(f"v_add_f32 v{RB+16+r}, v{RB+16+r}, v{RB+32+r}")
    for r in range(0, 16, 2):
        x0, x1, y0, y1 = ACC + r, ACC + r + 1, RB + 16 + r, RB + 17 + r
        a.e(f"v_cvt_pk_bf16_f32 v122, v{x0}, v{x1}")
        a.e(f"v_cvt_pk_bf16_f32 v123, v{y0}, v{y1}")
        a.e(f"v_lshlrev_b32 v{x0}, 16, v122")
        a.e(f"v_and_b32 v{x1}, 0xffff0000, v122")
        a.e(f"v_lshlrev_b32 v{y0}, 16, v123")
        a.e(f"v_and_b32 v{y1}, 0xffff0000, v123")
        a.e(f"v_mul_f32 v{x0}, v120, v{x0}")
        a.e(f"v_mul_f32 v{x1}, v120, v{x1}")
        a.e(f"v_mul_f32 v{y0}, v121, v{y0}")
        a.e(f"v_mul_f32 v{y1}, v121, v{y1}")
        a.e(f"v_cvt_pk_bf16_f32 v122, v{x0}, v{x1}")
        a.e(f"v_cvt_pk_bf16_f32 v123, v{y0}, v{y1}")
        a.e(f"v_lshlrev_b32 v{x0}, 16, v122")
        a.e(f"v_and_b32 v{x1}, 0xffff0000, v122")
        a.e(f"v_lshlrev_b32 v{y0}, 16, v123")
        a.e(f"v_and_b32 v{y1}, 0xffff0000, v123")
        a.e(f"v_add_f32 v{x0}, v{x0}, v{y0}")
        a.e(f"v_add_f32 v{x1}, v{x1}, v{y1}")
        a.e(f"v_cvt_pk_bf16_f32 v{124+r//2}, v{x0}, v{x1}")
    a.e("v_lshlrev_b32 v3, 10, v3")
    a.e("v_lshrrev_b32 v4, 5, v1")
    a.e("v_lshl_add_u32 v3, v4, 5, v3")
    a.e("s_lshl_b32 s60, s48, 15")
    a.e("s_lshl_b32 s61, s54, 6")
    a.e("s_add_u32 s60, s60, s61")
    a.e("buffer_store_dwordx4 v[124:127], v3, s[32:35], s60 offen")
    a.e("buffer_store_dwordx4 v[128:131], v3, s[32:35], s60 offen offset:16")
    a.e("K3_END:")
    a.e("s_endpgm")
    return a, 248 + 80, 72


def build(opt=None):
    opt = opt or {}
    ref = open(os.path.join(os.path.dirname(__file__), "..", "cdna_kernels", NAME + ".s.ref")).read()
    head = [l for l in ref.splitlines() if l.startswith(";") and "@launch" not in l and "Override launch" not in l
            and "grid=ceil" not in l]
    out = "\n".join(head) + "\n"
    out += "; @launch kernel=qkv_kernel grid=(256,1,1) block=(256,1,1) lds=163840\n"
    out += "; @launch kernel=attn_kernel grid=(256,1,1) block=(512,1,1) lds=81920\n"
    out += "; @launch kernel=oproj_kernel grid=(256,1,1) block=(256,1,1) lds=49152\n"
    out += '.amdgcn_target "amdgcn-amd-amdhsa--gfx950"\n'
    descs = ""
    ok = True
    for name, g in (("qkv_kernel", gen_k1), ("attn_kernel", gen_k2), ("oproj_kernel", gen_k3)):
        a, nv, ns = g(opt)
        probs = a.check(name)
        for p in probs:
            print("HAZARD", p)
            ok = False
        out += header(name) + a.text()
        accum = 248 if name == "oproj_kernel" else None
        descs += descriptor(name, nv, ns, accum)
    out += descs
    return out, ok


if __name__ == "__main__":
    opt = {}
    dst = os.path.join(os.path.dirname(__file__), "..", "cdna_kernels", NAME + ".s")
    for arg in sys.argv[1:]:
        if "=" in arg:
            k, v = arg.split("=")
            opt[k] = int(v)
        else:
            dst = arg
    txt, ok = build(opt)
    open(dst, "w").write(txt)
    print("wrote", dst, len(txt), "bytes", "hazards OK" if ok else "HAZARDS FOUND")
```

```python
import math
import struct
import sys
import os
sys.path.insert(0, os.path.dirname(__file__))
from asmlib import Asm, descriptor, header

NAME = "gated_mix__mha_block__sliding_local_dilated__prompt"

BR_STRIDE = 0x600000
T_STRIDE = 0x200000
OF = 0xC00000
WOF = 0x1000000
GATE = 0x1100000
MASK = 0x1108000
WS_BYTES = 268435456


def f32bits(x):
    return struct.unpack("<I", struct.pack("<f", x))[0]


QSCALE = f32bits(0.25 * math.log2(math.e))
NEGBIG = f32bits(-1.0e30)
LOG2E = f32bits(math.log2(math.e))


PROF = 0x1800000


class Prof:
    def __init__(self, a, on, kid):
        self.a, self.on, self.kid, self.n = a, on, kid, 1

    def start(self):
        if self.on:
            self.a.e("s_memrealtime s[80:81]")
            self.stamp()

    def stamp(self):
        if self.on and self.n < 9:
            self.a.e(f"s_memtime s[{80+2*self.n}:{81+2*self.n}]")
            self.n += 1

    def finish(self, wave_sgpr, srd):
        if not self.on:
            return
        a = self.a
        a.e("s_waitcnt vmcnt(0) lgkmcnt(0)")
        a.e("s_memtime s[98:99]")
        a.e("s_memrealtime s[100:101]")
        a.e("s_waitcnt lgkmcnt(0)")
        a.e("s_mov_b64 exec, 1")
        for i in range(11):
            a.e(f"v_mov_b32 v{8+i}, s{80+2*i}")
        a.e("v_mov_b32 v19, 0")
        a.e(f"s_add_u32 s80, s2, {self.kid*256}")
        a.e("s_lshl_b32 s80, s80, 3")
        a.e(f"s_add_u32 s80, s80, s{wave_sgpr}")
        a.e("s_lshl_b32 s80, s80, 6")
        a.e(f"s_add_u32 s80, s80, {PROF:#x}")
        for i in range(3):
            a.e(f"buffer_store_dwordx4 v[{8+4*i}:{11+4*i}], v19, s[{srd}:{srd+3}], s80 offen offset:{16*i}")


def vr(b, n=4):
    return f"v[{b}:{b+n-1}]"


def srd(a, d, base, nbytes):
    a.e(f"s_mov_b32 s{d}, s{base}")
    a.e(f"s_mov_b32 s{d+1}, s{base+1}")
    a.e(f"s_mov_b32 s{d+2}, {nbytes:#x}")
    a.e(f"s_mov_b32 s{d+3}, 0x20000")


def gen_k1(opt):
    a = Asm()
    a.e("s_cmp_ge_u32 s2, 256")
    a.e("s_cbranch_scc1 K1_END")
    pf = Prof(a, opt.get("prof"), 0)
    pf.start()
    a.e("s_load_dwordx4 s[4:7], s[0:1], 0")
    a.e("s_load_dwordx2 s[8:9], s[0:1], 16")
    a.e("s_load_dwordx4 s[12:15], s[0:1], 32")
    a.e("s_load_dwordx2 s[16:17], s[0:1], 48")
    a.e("s_load_dwordx2 s[18:19], s[0:1], 72")
    a.e("s_and_b32 s47, s2, 7")
    a.e("s_lshr_b32 s48, s2, 3")
    if opt.get("k1map", 0) == 0:
        a.e("s_and_b32 s40, s47, 1")
        a.e("s_lshl_b32 s40, s40, 3")
        a.e("s_and_b32 s49, s48, 7")
        a.e("s_add_u32 s40, s40, s49")
        a.e("s_lshr_b32 s41, s47, 1")
        a.e("s_lshl_b32 s41, s41, 2")
        a.e("s_lshr_b32 s49, s48, 3")
        a.e("s_add_u32 s41, s41, s49")
        a.e("s_lshr_b32 s42, s41, 3")
        a.e("s_and_b32 s43, s41, 7")
    else:
        a.e("s_and_b32 s40, s48, 15")
        a.e("s_lshr_b32 s42, s48, 4")
        a.e("s_mov_b32 s43, s47")
    a.e("v_lshrrev_b32 v2, 6, v0")
    a.e("v_and_b32 v1, 63, v0")
    a.e("v_readfirstlane_b32 s44, v2")
    a.e("v_lshrrev_b32 v14, 3, v1")
    a.e("v_and_b32 v15, 7, v1")
    a.e("v_lshrrev_b32 v16, 4, v1")
    a.e("s_lshr_b32 s45, s44, 1")
    a.e("s_and_b32 s46, s44, 1")
    a.e("s_lshl_b32 s49, s40, 7")
    a.e("s_lshl_b32 s50, s44, 5")
    a.e("s_add_u32 s49, s49, s50")
    a.e("v_add_u32 v17, s49, v14")
    a.e("v_lshlrev_b32 v17, 10, v17")
    a.e("v_xor_b32 v18, v15, v16")
    a.e("v_xor_b32 v19, 4, v18")
    a.e("v_lshl_add_u32 v2, v18, 4, v17")
    a.e("v_lshl_add_u32 v3, v19, 4, v17")
    a.e("v_add_u32 v3, 0x2000, v3")
    a.e("v_add_u32 v4, 0x4000, v2")
    a.e("v_add_u32 v5, 0x4000, v3")
    a.e("s_lshl_b32 s50, s44, 4")
    a.e("v_add_u32 v17, s50, v14")
    a.e("v_mul_u32_u24 v17, 0xc00, v17")
    a.e("v_and_b32 v18, 1, v16")
    a.e("v_lshlrev_b32 v18, 2, v18")
    a.e("v_xor_b32 v18, v15, v18")
    a.e("v_lshl_add_u32 v6, v18, 4, v17")
    a.e("s_lshl_b32 s50, s43, 7")
    a.e("v_add_u32 v6, s50, v6")
    a.e("v_add_u32 v7, 0x6000, v6")
    a.e("s_lshl_b32 s50, s44, 12")
    a.e("s_lshl_b32 s51, s44, 11")
    a.e("s_add_u32 s51, s51, 0x10000")
    a.e("s_mov_b32 s48, 0")
    a.e("s_mov_b32 s49, 0")
    a.e("s_waitcnt lgkmcnt(0)")
    srd(a, 20, 4, 2048 * 512 * 2)
    a.e("s_cmp_eq_u32 s42, 0")
    a.e("s_cselect_b32 s24, s6, s12")
    a.e("s_cselect_b32 s25, s7, s13")
    a.e(f"s_mov_b32 s26, {512*1536*2:#x}")
    a.e("s_mov_b32 s27, 0x20000")

    def dma_list(c):
        st = c % 4
        L = []
        for i in range(4):
            L.append((f"s_add_u32 m0, s50, {st*16384 + i*1024:#x}",
                      f"buffer_load_dwordx4 v{2+i}, s[20:23], s48 offen lds"))
        for seg in range(3):
            for i in range(2):
                L.append((f"s_add_u32 m0, s51, {st*24576 + seg*8192 + i*1024 - seg*1024:#x}",
                          f"buffer_load_dwordx4 v{6+i}, s[24:27], s49 offen offset:{seg*1024} lds"))
        return L

    def emit_dma(c, item, filler=None):
        a.e(item[0])
        if filler:
            a.e(filler)
        else:
            a.e("s_nop 0")
        a.vmem(item[1], f"c{c}")

    def adv_dma():
        a.e("s_add_u32 s48, s48, 128")
        a.e(f"s_add_u32 s49, s49, {64*3072:#x}")

    for c in range(4):
        for it in dma_list(c):
            emit_dma(c, it)
        adv_dma()

    pf.stamp()
    srd(a, 28, 18, WS_BYTES)
    srd(a, 36, 16, 1024)
    a.e("v_and_b32 v17, 31, v1")
    a.e("v_lshrrev_b32 v18, 5, v1")
    a.e("v_bfe_u32 v19, v1, 1, 3")
    a.e("v_xor_b32 v19, v19, v18")
    a.e("s_lshl_b32 s47, s45, 6")
    a.e("v_add_u32 v20, s47, v17")
    a.e("v_lshlrev_b32 v20, 7, v20")
    for ks in range(4):
        a.e(f"v_xor_b32 v21, {ks*2}, v19")
        a.e(f"v_lshl_add_u32 v{8+ks}, v21, 4, v20")
    a.e("v_bfe_u32 v21, v1, 2, 2")
    a.e("v_lshl_add_u32 v22, v18, 3, v21")
    a.e("v_lshlrev_b32 v22, 7, v22")
    a.e("v_bfe_u32 v23, v1, 4, 1")
    a.e("v_lshlrev_b32 v23, 1, v23")
    a.e("v_bfe_u32 v24, v1, 1, 1")
    a.e("v_add_u32 v23, v23, v24")
    a.e("s_lshl_b32 s47, s46, 2")
    a.e("v_add_u32 v23, s47, v23")
    a.e("v_bfe_u32 v24, v1, 3, 1")
    a.e("v_lshlrev_b32 v24, 2, v24")
    a.e("v_xor_b32 v23, v23, v24")
    a.e("v_lshl_add_u32 v22, v23, 4, v22")
    a.e("v_and_b32 v24, 1, v1")
    a.e("v_lshl_add_u32 v22, v24, 3, v22")
    a.e("v_add_u32 v12, 0x10000, v22")
    a.e(f"v_add_u32 v13, {0x10000 + 49152:#x}, v22")

    a.e("v_lshlrev_b32 v14, 4, v1")
    a.e("s_lshl_b32 s52, s2, 3")
    a.e("s_lshl_b32 s47, s44, 1")
    a.e("s_add_u32 s52, s52, s47")
    a.e("s_lshl_b32 s53, s52, 10")
    a.vmem("buffer_load_dwordx4 v[176:179], v14, s[20:23], s53 offen", "aux")
    a.vmem("buffer_load_dwordx4 v[180:183], v14, s[20:23], s53 offen offset:1024", "aux")
    a.vmem("buffer_load_dwordx4 v[184:187], v14, s[36:39], 0 offen", "aux")
    a.e("s_lshl_b32 s54, s2, 2")
    a.e("s_add_u32 s54, s54, s44")
    a.e("s_cmp_lt_u32 s54, 512")
    a.e("s_cselect_b32 s32, s8, s14")
    a.e("s_cselect_b32 s33, s9, s15")
    a.e(f"s_mov_b32 s34, {512*512*2:#x}")
    a.e("s_mov_b32 s35, 0x20000")
    a.e("s_and_b32 s55, s54, 31")
    a.e("s_lshl_b32 s55, s55, 14")
    a.e("s_bfe_u32 s56, s54, 0x40005")
    a.e("s_lshl_b32 s56, s56, 6")
    a.e("s_add_u32 s55, s55, s56")
    a.e("s_add_u32 s56, s55, 0x2000")
    a.e("v_bfe_u32 v21, v1, 2, 1")
    a.e("v_lshlrev_b32 v21, 4, v21")
    a.e("v_and_b32 v22, 3, v1")
    a.e("v_add_u32 v21, v21, v22")
    a.e("v_bfe_u32 v22, v1, 3, 2")
    a.e("v_lshl_add_u32 v21, v22, 2, v21")
    a.e("v_lshlrev_b32 v21, 1, v21")
    a.e("v_lshl_add_u32 v15, v18, 12, v21")
    for j in range(8):
        a.vmem(f"buffer_load_ushort v{188+j}, v15, s[32:35], s{55 + (j>>2)} offen offset:{(j&3)*1024}", "aux")

    FA, FB = 40, 60
    ACC = 80

    def frag_reads(c, ks, fs):
        st = c % 4
        L = []
        L.append(f"ds_read_b128 {vr(fs)}, v{8+ks} offset:{st*16384}")
        wb = 12 + (st >> 1)
        wo = (st & 1) * 24576 + ks * 2048
        L.append(f"ds_read_b64_tr_b16 {vr(fs+8,2)}, v{wb} offset:{wo}")
        L.append(f"ds_read_b64_tr_b16 {vr(fs+10,2)}, v{wb} offset:{wo+512}")
        L.append(f"ds_read_b128 {vr(fs+4)}, v{8+ks} offset:{st*16384+4096}")
        for seg in (1, 2):
            L.append(f"ds_read_b64_tr_b16 {vr(fs+8+seg*4,2)}, v{wb} offset:{wo+seg*8192}")
            L.append(f"ds_read_b64_tr_b16 {vr(fs+10+seg*4,2)}, v{wb} offset:{wo+seg*8192+512}")
        return L

    def mfmas(fs, first):
        L = []
        for seg in range(3):
            for rb in range(2):
                acc = ACC + (seg * 2 + rb) * 16
                x = vr(fs + rb * 4)
                w = vr(fs + 8 + seg * 4)
                cc = "0" if first else vr(acc, 16)
                if seg < 2:
                    L.append(f"v_mfma_f32_32x32x16_bf16 {vr(acc,16)}, {w}, {x}, {cc}")
                else:
                    L.append(f"v_mfma_f32_32x32x16_bf16 {vr(acc,16)}, {x}, {w}, {cc}")
        return L

    aux = []

    def A(t):
        aux.append(t)
    for j in range(4):
        A(f"v_lshl_or_b32 v{196+j}, v{189+2*j}, 16, v{188+2*j}")
    A("s_lshl_b32 s57, s54, 10")
    A(f"s_add_u32 s57, s57, {WOF:#x}")
    A(("VM", "buffer_store_dwordx4 v[196:199], v14, s[28:31], s57 offen", "st"))
    for d in range(4):
        A(f"v_lshlrev_b32 v{200+2*d}, 16, v{184+d}")
        A(f"v_and_b32 v{201+2*d}, 0xffff0000, v{184+d}")
    for row in range(2):
        xb = 176 + row * 4
        acc = 216 + row
        for d in range(4):
            A(f"v_lshlrev_b32 v208, 16, v{xb+d}")
            A(f"v_and_b32 v209, 0xffff0000, v{xb+d}")
            A(f"v_mul_f32 v208, v208, v{200+2*d}")
            A(f"v_mul_f32 v209, v209, v{201+2*d}")
            A("v_cvt_pk_bf16_f32 v210, v208, v209")
            A("v_lshlrev_b32 v208, 16, v210")
            A("v_and_b32 v209, 0xffff0000, v210")
            if d == 0:
                A(f"v_add_f32 v{acc}, v208, v209")
            else:
                A(f"v_add_f32 v{acc}, v{acc}, v208")
                A(f"v_add_f32 v{acc}, v{acc}, v209")
    for mod in ("quad_perm:[1,0,3,2]", "quad_perm:[2,3,0,1]", "row_half_mirror", "row_mirror"):
        A("s_nop 1")
        A(f"v_add_f32_dpp v216, v216, v216 {mod} row_mask:0xf bank_mask:0xf")
        A(f"v_add_f32_dpp v217, v217, v217 {mod} row_mask:0xf bank_mask:0xf")
    A("s_nop 1")
    for row in range(2):
        for q in range(4):
            A(f"v_readlane_b32 s{60+row*4+q}, v{216+row}, {q*16}")
    A("s_nop 1")
    A("v_cmp_eq_u32 vcc, 0, v1")
    A("v_mov_b32 v208, s60")
    A("v_add_f32 v208, s61, v208")
    A("v_add_f32 v208, s62, v208")
    A("v_add_f32 v208, s63, v208")
    A("v_mov_b32 v209, s64")
    A("v_add_f32 v209, s65, v209")
    A("v_add_f32 v209, s66, v209")
    A("v_add_f32 v209, s67, v209")
    A("v_cndmask_b32 v208, v209, v208, vcc")
    A("v_cvt_pk_bf16_f32 v208, v208, v208")
    A("v_and_b32 v208, 0xffff0000, v208")
    A(f"v_mul_f32 v208, {f32bits(-math.log2(math.e)):#x}, v208")
    A("v_exp_f32 v208, v208")
    A("s_nop 0")
    A("v_add_f32 v208, 1.0, v208")
    A("v_rcp_f32 v208, v208")
    A("s_nop 0")
    A("v_cvt_pk_bf16_f32 v208, v208, v208")
    A("v_and_b32 v208, 0xffff0000, v208")
    A("v_sub_f32 v209, 1.0, v208")
    A("v_cvt_pk_bf16_f32 v209, v209, v209")
    A("v_and_b32 v209, 0xffff0000, v209")
    A("v_lshlrev_b32 v210, 2, v1")
    A("s_lshl_b32 s57, s52, 2")
    A(f"s_add_u32 s57, s57, {GATE:#x}")
    A("s_add_u32 s58, s57, 0x2000")
    A("s_mov_b64 exec, 3")
    A(("VM", "buffer_store_dword v208, v210, s[28:31], s57 offen", "st"))
    A(("VM", "buffer_store_dword v209, v210, s[28:31], s58 offen", "st"))
    A("s_mov_b64 exec, -1")
    A("s_lshl_b32 s57, s54, 3")
    A("s_sub_u32 s58, s57, 48")
    A("s_cmp_lt_u32 s54, 4")
    A("s_cselect_b32 s57, s57, s58")
    A("s_cmp_lt_u32 s54, 6")
    A("s_cselect_b32 s57, s57, 1000")
    A("v_lshlrev_b32 v208, 2, v18")
    A("v_sub_u32 v208, v17, v208")
    A("v_subrev_u32 v208, s57, v208")
    A(f"v_mov_b32 v215, {NEGBIG:#x}")
    for e in range(4):
        A(f"v_subrev_u32 v209, {e}, v208")
        A("v_and_b32 v209, -15, v209")
        A("v_cmp_eq_u32 vcc, 0, v209")
        A("s_nop 1")
        A(f"v_cndmask_b32 v{220+e}, v215, 0, vcc")
    A("s_lshl_b32 s57, s54, 10")
    A(f"s_add_u32 s57, s57, {MASK:#x}")
    A("s_cmp_lt_u32 s54, 8")
    A("s_cselect_b64 exec, -1, 0")
    A(("VMX", "buffer_store_dwordx4 v[220:223], v14, s[28:31], s57 offen", "st"))
    A("s_mov_b64 exec, -1")

    def emit_aux(n):
        k = 0
        while aux and k < n:
            it = aux.pop(0)
            if isinstance(it, tuple):
                if it[0] == "VMX":
                    a.e("s_cbranch_execz K1_NOMASK")
                    a.e(it[1])
                    a.e("s_waitcnt vmcnt(0)")
                    a.e("K1_NOMASK:")
                else:
                    a.vmem(it[1], it[2])
            else:
                a.e(it)
                if it.startswith("s_mov_b64 exec, 3") or it.startswith("s_cselect_b64 exec") or it.startswith("s_nop") \
                        or it.startswith("v_cmp") or it.startswith("s_cmp"):
                    k -= 1
            if isinstance(it, tuple) and aux and (isinstance(aux[0], tuple) or aux[0].startswith("s_mov_b64 exec")):
                k -= 1
            k += 1

    a.wait(vm="c0")
    a.e("s_barrier")
    pf.stamp()
    for r in frag_reads(0, 0, FA):
        a.ds(r, "f")
    pend = []
    step = 0
    for c in range(8):
        for ks in range(4):
            cur, nxt = (FA, FB) if step % 2 == 0 else (FB, FA)
            a.wait(lg="f")
            if ks == 3 and c < 7:
                a.wait(vm=f"c{c+1}")
                a.e("s_barrier")
                if c in (0, 2, 4, 6):
                    pf.stamp()
                if c + 4 < 8:
                    pend = [(c + 4, it) for it in dma_list(c + 4)]
            M = mfmas(cur, step == 0)
            if ks < 3:
                R = frag_reads(c, ks + 1, nxt)
            elif c < 7:
                R = frag_reads(c + 1, 0, nxt)
            else:
                R = []
            ndma = {3: 3, 0: 3, 1: 2, 2: 2}[ks]
            if c == 3 and ks == 0:
                a.wait(vm="aux")
            for mi, m in enumerate(M):
                a.e(m)
                if mi < 3:
                    for r in R[mi * 3:(mi + 1) * 3]:
                        a.ds(r, "f")
                elif pend and ndma > 0:
                    cc, it = pend.pop(0)
                    emit_dma(cc, it)
                    ndma -= 1
                    if not pend:
                        adv_dma()
                if c >= 3 and (mi >= 3 or not R):
                    emit_aux(3)
            step += 1
    assert not pend
    emit_aux(1000)
    pf.stamp()

    a.e("s_mul_i32 s57, s42, 0x600000")
    a.e("s_lshl_b32 s58, s43, 2")
    a.e("s_lshl_b32 s59, s46, 1")
    a.e("s_add_u32 s58, s58, s59")
    a.e("s_lshl_b32 s58, s58, 16")
    a.e("s_add_u32 s57, s57, s58")
    a.e("s_lshl_b32 s58, s40, 2")
    a.e("s_lshl_b32 s59, s45, 1")
    a.e("s_add_u32 s58, s58, s59")
    a.e("s_lshl_b32 s58, s58, 10")
    a.e("s_add_u32 s57, s57, s58")
    a.e("s_add_u32 s58, s57, 0x10000")
    a.e(f"s_add_u32 s59, s57, {T_STRIDE:#x}")
    a.e(f"s_add_u32 s60, s58, {T_STRIDE:#x}")
    a.e(f"s_add_u32 s61, s57, {2*T_STRIDE:#x}")
    a.e("v_bfe_u32 v21, v1, 4, 1")
    a.e("v_lshlrev_b32 v21, 16, v21")
    a.e("v_lshl_add_u32 v21, v18, 8, v21")
    a.e("v_and_b32 v22, 15, v1")
    a.e("v_lshl_add_u32 v21, v22, 4, v21")
    a.e(f"s_mov_b32 s62, {QSCALE:#x}")
    a.nop(4)
    tmp = [40, 44, 48, 52, 56, 60, 64, 68, 72, 76]
    ti = 0
    for seg in range(3):
        for rb in range(2):
            acc = ACC + (seg * 2 + rb) * 16
            for half in range(2):
                t = tmp[ti % len(tmp)]
                ti += 1
                b = acc + half * 8
                if seg == 0:
                    for r in range(8):
                        a.e(f"v_mul_f32 v{b+r}, s62, v{b+r}")
                for r in range(4):
                    a.e(f"v_cvt_pk_bf16_f32 v{t+r}, v{b+2*r}, v{b+2*r+1}")
                if seg < 2:
                    a.vmem(f"buffer_store_dwordx4 {vr(t)}, v14, s[28:31], s{57+seg*2+half} offen offset:{rb*1024}", "st")
                else:
                    a.vmem(f"buffer_store_dwordx4 {vr(t)}, v21, s[28:31], s61 offen offset:{rb*1024+half*512}", "st")
    pf.finish(44, 28)
    a.e("K1_END:")
    a.e("s_endpgm")
    return a, 224, (102 if opt.get('prof') else 72)


def gen_k2(opt):
    a = Asm()
    NQ = 4
    NKT = 16
    a.e("s_cmp_ge_u32 s2, 256")
    a.e("s_cbranch_scc1 K2_END")
    pf = Prof(a, opt.get("prof"), 1)
    pf.start()
    a.e("s_load_dwordx2 s[18:19], s[0:1], 72")
    a.e("s_and_b32 s40, s2, 7")
    a.e("s_lshr_b32 s41, s2, 3")
    a.e("s_lshl_b32 s40, s40, 2")
    a.e("s_and_b32 s42, s41, 3")
    a.e("s_add_u32 s40, s40, s42")
    a.e("s_lshr_b32 s41, s41, 2")
    a.e("v_lshrrev_b32 v2, 6, v0")
    a.e("v_and_b32 v1, 63, v0")
    a.e("v_readfirstlane_b32 s44, v2")
    a.e("v_lshlrev_b32 v2, 4, v1")
    a.e("v_lshrrev_b32 v4, 5, v1")
    a.e("v_and_b32 v3, 15, v1")
    a.e("v_lshlrev_b32 v3, 4, v3")
    a.e("v_lshl_add_u32 v3, v4, 8, v3")
    a.e("s_and_b32 s45, s44, 1")
    a.e("s_lshr_b32 s46, s44, 1")
    a.e("s_lshl_b32 s47, s40, 16")
    a.e("s_lshl_b32 s48, s41, 13")
    a.e("s_lshl_b32 s49, s45, 12")
    a.e("s_add_u32 s48, s48, s47")
    a.e("s_add_u32 s49, s49, s48")
    a.e("s_lshl_b32 s50, s46, 14")
    a.e("s_add_u32 s50, s50, s47")
    a.e(f"s_add_u32 s52, s50, {T_STRIDE:#x}")
    a.e(f"s_add_u32 s56, s50, {2*T_STRIDE:#x}")
    for i in range(1, 4):
        a.e(f"s_add_u32 s{52+i}, s52, {i*4096}")
        a.e(f"s_add_u32 s{56+i}, s56, {i*4096}")
    a.e("s_mov_b32 s60, 0x0000ffff")
    a.e("s_mov_b32 s61, 0x0000ffff")
    a.e("s_waitcnt lgkmcnt(0)")
    srd(a, 28, 18, WS_BYTES)

    Q = 8
    KV = 24
    NB = 3
    P = 60
    MISC = 76
    S = 96
    C = 128
    O = 192

    def kb(kt):
        return KV + (kt % NB) * 12

    def load_kv(kt):
        b = kb(kt)
        off = (kt & 3) * 1024
        a.vmem(f"buffer_load_dwordx4 {vr(b)}, v2, s[28:31], s{52+(kt>>2)} offen offset:{off}", f"k{kt}")
        a.e("s_mov_b64 exec, s[60:61]")
        a.vmem(f"buffer_load_dwordx4 {vr(b+4)}, v3, s[28:31], s{56+(kt>>2)} offen offset:{off}", f"v{kt}")
        a.vmem(f"buffer_load_dwordx4 {vr(b+8)}, v3, s[28:31], s{56+(kt>>2)} offen offset:{off+512}", f"v{kt}")
        a.e("s_mov_b64 exec, -1")

    for j in range(NQ):
        a.vmem(f"buffer_load_dwordx4 {vr(Q+4*j)}, v2, s[28:31], s49 offen offset:{j*1024}", "q")
    a.e("v_mov_b32 v5, 0x3f803f80")
    for b in range(NB):
        for r in range(8):
            a.e(f"v_mov_b32 v{KV+b*12+4+r}, v5")
    a.e("s_mov_b32 s62, 0")
    a.e("K2_RESTART:")
    load_kv(0)
    load_kv(1)
    a.e("s_cmp_lg_u32 s62, 0")
    a.e("s_cbranch_scc1 K2_MAIN")
    a.e("v_cmp_gt_u32 vcc, 32, v1")
    a.e("v_mov_b32 v81, 0")
    a.e("v_mov_b32 v82, 0")
    a.e("v_mov_b32 v83, 0")
    a.e("v_mov_b32 v84, 0x3f80")
    a.e("v_cndmask_b32 v80, 0, v84, vcc")
    a.e("v_mov_b32 v77, 0")
    a.e("v_mov_b32 v78, 0")
    a.e("v_mov_b32 v79, 0")
    a.e("v_mov_b32 v85, 0")
    a.e("v_mov_b32 v86, 0")
    a.e("v_mov_b32 v87, 0")
    a.wait(vm=["q", "k0"])
    pf.stamp()
    for j in range(NQ):
        a.e(f"v_mfma_f32_32x32x16_bf16 {vr(O+16*j,16)}, {vr(kb(0))}, {vr(Q+4*j)}, 0")
    a.nop(9)
    for j in range(NQ):
        o = O + 16 * j
        t = 88 + j
        a.e(f"v_max3_f32 v{t}, v{o}, v{o+1}, v{o+2}")
        for r in range(3, 15, 2):
            a.e(f"v_max3_f32 v{t}, v{t}, v{o+r}, v{o+r+1}")
        a.e(f"v_max_f32 v{t}, v{t}, v{o+15}")
        bb = 76 if j % 2 == 0 else 84
        a.e(f"v_cvt_pk_bf16_f32 v{bb}, -v{t}, 0")
        a.nop(2)
        a.e(f"v_mfma_f32_32x32x16_bf16 {vr(C+16*j,16)}, v[80:83], {vr(bb)}, 0")
    a.nop(10)
    a.e("K2_MAIN:")
    assert len(a.vm) == 5
    a.e("s_waitcnt vmcnt(5)")

    tiles = [(kt, j) for kt in range(NKT) for j in range(NQ)]

    def qk(n):
        kt, j = tiles[n]
        return f"v_mfma_f32_32x32x16_bf16 {vr(S+16*(n%2),16)}, {vr(kb(kt))}, {vr(Q+4*j)}, {vr(C+16*j,16)}"

    def pv(n, m):
        kt, j = tiles[n]
        cc = "0" if (kt == 0 and m == 0) else vr(O + 16 * j, 16)
        return f"v_mfma_f32_32x32x16_bf16 {vr(O+16*j,16)}, {vr(kb(kt)+4+4*m)}, {vr(P+8*(n%2)+4*m)}, {cc}"

    prio_at = {0: 3, 32: 2, 52: 1, 61: 0} if opt.get("prio", 1) else {}
    pf.stamp()
    a.e(qk(0))
    a.nop(12)
    NT = len(tiles)
    for n in range(NT):
        kt, j = tiles[n]
        s = S + 16 * (n % 2)
        p = P + 8 * (n % 2)
        if n == 32:
            pf.stamp()
        if n in prio_at:
            a.e(f"s_setprio {prio_at[n]}")
        def ex(i):
            a.e(f"v_exp_f32 v{s+i}, v{s+i}")

        def cv(i):
            a.e(f"v_cvt_pk_bf16_f32 v{p+i}, v{s+2*i}, v{s+2*i+1}")
        ex(0); ex(1)
        if n > 0:
            a.e(pv(n - 1, 1))
        ex(2); ex(3); cv(0); ex(4); ex(5); cv(1)
        if n + 1 < NT:
            if tiles[n + 1][1] == 0:
                a.wait(vm=f"k{tiles[n+1][0]}")
            a.e(qk(n + 1))
        ex(6); ex(7); cv(2); ex(8); ex(9); cv(3)
        if j == 1 and kt + 2 < NKT:
            load_kv(kt + 2)
        ex(10); ex(11)
        if j == 0:
            a.wait(vm=f"v{kt}")
        a.e(pv(n, 0))
        cv(4); ex(12); ex(13); cv(5); ex(14); ex(15); cv(6)
        a.e("s_nop 0") if False else None
        cv(7)
    a.nop(2)
    a.e(pv(NT - 1, 1))
    a.nop(12)
    pf.stamp()
    a.e("s_cmp_lg_u32 s62, 0")
    a.e("s_cbranch_scc1 K2_COMBINE")
    a.e(f"v_mov_b32 v84, {f32bits(2.0**100):#x}")
    a.e("v_mov_b32 v85, 0")
    a.e("s_mov_b64 s[64:65], -1")
    for j in range(NQ):
        o = O + 16 * j
        for r in range(8):
            a.e(f"v_fma_f32 v85, v{o+r}, 0, v85")
        a.e(f"v_cmp_lt_f32 vcc, v{o+8}, v84")
        a.e("s_nop 0")
        a.e("s_and_b64 s[64:65], s[64:65], vcc")
    a.e("v_cmp_o_f32 vcc, v85, v85")
    a.e("s_nop 0")
    a.e("s_and_b64 s[64:65], s[64:65], vcc")
    a.e("s_cmp_eq_u64 s[64:65], -1")
    a.e("s_cbranch_scc1 K2_COMBINE")
    a.e(f"v_mov_b32 v88, {NEGBIG:#x}")
    for j in range(1, NQ):
        a.e(f"v_mov_b32 v{88+j}, v88")
    a.e("s_mov_b32 s63, 0")
    a.e("K2_FB_LOOP:")
    a.e("s_add_u32 s66, s52, s63")
    a.e(f"buffer_load_dwordx4 {vr(kb(0))}, v2, s[28:31], s66 offen")
    a.e("s_waitcnt vmcnt(0)")
    for j in range(NQ):
        a.e(f"v_mfma_f32_32x32x16_bf16 {vr(O+16*j,16)}, {vr(kb(0))}, {vr(Q+4*j)}, 0")
    a.nop(12)
    for j in range(NQ):
        o = O + 16 * j
        for r in range(0, 16, 2):
            a.e(f"v_max3_f32 v{88+j}, v{88+j}, v{o+r}, v{o+r+1}")
    a.e("s_add_u32 s63, s63, 1024")
    a.e(f"s_cmp_lt_u32 s63, {NKT*1024}")
    a.e("s_cbranch_scc1 K2_FB_LOOP")
    for j in range(NQ):
        a.e(f"v_mov_b32 v84, v{88+j}")
        a.nop(2)
        a.e(f"v_permlane32_swap_b32 v84, v{88+j}")
        a.nop(2)
        a.e(f"v_max_f32 v84, v84, v{88+j}")
        for r in range(16):
            a.e(f"v_sub_f32 v{C+16*j+r}, 0, v84")
    a.e("s_mov_b32 s62, 1")
    a.e("s_branch K2_RESTART")

    a.e("K2_COMBINE:")
    a.vm = []
    LQ, LKC, LKP, LV0, LV1, LVP = 8, 12, 16, 28, 32, 40
    MC = 128
    for j in range(NQ):
        a.e(f"v_mov_b32 v{O+16*j+9}, v{C+16*j}")
    a.e("s_lshl_b32 s66, s44, 10")
    a.e("s_add_u32 s66, s66, s48")
    a.e(f"s_add_u32 s66, s66, {BR_STRIDE:#x}")
    a.e("s_lshl_b32 s67, s41, 3")
    a.e("s_add_u32 s67, s67, s44")
    a.e("s_cmp_eq_u32 s67, 0")
    a.e("s_cselect_b32 s68, 0, 1024")
    a.e("s_cselect_b32 s69, 2048, 0")
    a.e(f"s_add_u32 s69, s69, {MASK+4096:#x}")
    a.e(f"s_add_u32 s70, s66, {T_STRIDE:#x}")
    a.e("s_sub_u32 s71, s70, s68")
    a.e(f"s_add_u32 s72, s66, {2*T_STRIDE:#x}")
    a.e("s_sub_u32 s73, s72, s68")
    a.e(f"s_mov_b32 s74, {MASK:#x}")
    a.vmem(f"buffer_load_dwordx4 {vr(LQ)}, v2, s[28:31], s66 offen", "l")
    a.vmem(f"buffer_load_dwordx4 {vr(LKC)}, v2, s[28:31], s70 offen", "l")
    a.vmem(f"buffer_load_dwordx4 {vr(LKP)}, v2, s[28:31], s71 offen", "l")
    for g in range(4):
        a.vmem(f"buffer_load_dwordx4 {vr(MC+4*g)}, v2, s[28:31], s74 offen offset:{g*1024}", "l")
    for g in range(2):
        a.vmem(f"buffer_load_dwordx4 {vr(MC+24+4*g)}, v2, s[28:31], s69 offen offset:{g*1024}", "l")
    a.e("s_mov_b64 exec, s[60:61]")
    a.vmem(f"buffer_load_dwordx4 {vr(LV0)}, v3, s[28:31], s72 offen", "lv")
    a.vmem(f"buffer_load_dwordx4 {vr(LV1)}, v3, s[28:31], s72 offen offset:512", "lv")
    a.vmem(f"buffer_load_dwordx4 {vr(LVP)}, v3, s[28:31], s73 offen offset:512", "lv")
    a.e("s_mov_b64 exec, -1")
    a.e("s_mul_i32 s75, s44, 10240")
    a.e("v_add_u32 v6, s75, v2")
    a.e("v_lshlrev_b32 v7, 3, v1")
    a.e("v_add_u32 v7, s75, v7")
    for j in range(NQ):
        o = O + 16 * j
        a.ds(f"ds_write_b128 v6, {vr(o)} offset:{j*2560}", "w")
        a.ds(f"ds_write_b128 v6, {vr(o+4)} offset:{j*2560+1024}", "w")
        a.ds(f"ds_write_b64 v7, {vr(o+8,2)} offset:{j*2560+2048}", "w")
    a.e("s_mul_i32 s75, s45, 10240")
    a.e("s_mul_i32 s76, s46, 2560")
    a.e("s_add_u32 s75, s75, s76")
    a.e("v_add_u32 v6, s75, v2")
    a.e("v_lshlrev_b32 v7, 3, v1")
    a.e("v_add_u32 v7, s75, v7")
    a.wait(lg="w")
    pf.stamp()
    a.e("s_barrier")
    pf.stamp()
    R = 192
    for i in range(4):
        o = R + 16 * i
        a.ds(f"ds_read_b64 {vr(o+8,2)}, v7 offset:{i*20480+2048}", "r0")
    for i in range(4):
        o = R + 16 * i
        a.ds(f"ds_read_b128 {vr(o)}, v6 offset:{i*20480}", f"r{i+1}")
        a.ds(f"ds_read_b128 {vr(o+4)}, v6 offset:{i*20480+1024}", f"r{i+1}")
    a.wait(lg="r0")
    a.e(f"v_min3_f32 v84, v{R+9}, v{R+16+9}, v{R+32+9}")
    a.e(f"v_min_f32 v84, v84, v{R+48+9}")
    for i in range(4):
        a.e(f"v_sub_f32 v{88+i}, v84, v{R+16*i+9}")
    for i in range(4):
        a.e(f"v_exp_f32 v{88+i}, v{88+i}")
    a.e("s_nop 0")
    a.e(f"v_mul_f32 v85, v88, v{R+8}")
    for i in range(1, 4):
        a.e(f"v_fmac_f32 v85, v{88+i}, v{R+16*i+8}")
    a.e("v_rcp_f32 v85, v85")
    a.e("s_nop 0")
    for i in range(4):
        a.e(f"v_mul_f32 v{88+i}, v{88+i}, v85")
    for i in range(4):
        a.wait(lg=f"r{i+1}")
        for r in range(8):
            if i == 0:
                a.e(f"v_mul_f32 v{96+r}, v88, v{R+r}")
            else:
                a.e(f"v_fmac_f32 v{96+r}, v{88+i}, v{R+16*i+r}")
    for r in range(4):
        a.e(f"v_cvt_pk_bf16_f32 v{104+r}, v{96+2*r}, v{97+2*r}")
    a.e("s_lshl_b32 s75, s41, 3")
    a.e("s_lshl_b32 s76, s45, 2")
    a.e("s_add_u32 s75, s75, s76")
    a.e("s_add_u32 s75, s75, s46")
    a.e("s_lshl_b32 s75, s75, 6")
    a.e("s_add_u32 s75, s75, s40")
    a.e("s_lshl_b32 s75, s75, 10")
    a.e(f"s_add_u32 s75, s75, {OF:#x}")
    a.vmem("buffer_store_dwordx4 v[104:107], v2, s[28:31], s75 offen", "st")

    pf.stamp()
    SC, SP = 192, 208
    a.wait(vm="l")
    a.e(f"v_mfma_f32_32x32x16_bf16 {vr(SC,16)}, {vr(LKC)}, {vr(LQ)}, {vr(MC,16)}")
    a.e(f"v_mfma_f32_32x32x16_bf16 {vr(SP,16)}, {vr(LKP)}, {vr(LQ)}, {vr(MC+16,16)}")
    a.nop(11)
    vals = [SC + r for r in range(16)] + [SP + 8 + r for r in range(8)]
    a.e(f"v_max3_f32 v84, v{vals[0]}, v{vals[1]}, v{vals[2]}")
    for i in range(3, 23, 2):
        a.e(f"v_max3_f32 v84, v84, v{vals[i]}, v{vals[i+1]}")
    a.e(f"v_max_f32 v84, v84, v{vals[23]}")
    a.e("v_mov_b32 v85, v84")
    a.nop(2)
    a.e("v_permlane32_swap_b32 v84, v85")
    a.nop(2)
    a.e("v_max_f32 v84, v84, v85")
    for v in vals:
        a.e(f"v_sub_f32 v{v}, v{v}, v84")
    for v in vals:
        a.e(f"v_exp_f32 v{v}, v{v}")
    a.e("s_nop 0")
    LP = 60
    for i in range(12):
        a.e(f"v_cvt_pk_bf16_f32 v{LP+i}, v{vals[2*i]}, v{vals[2*i+1]}")
    a.wait(vm="lv")
    a.nop(1)
    LO = 224
    a.e(f"v_mfma_f32_32x32x16_bf16 {vr(LO,16)}, {vr(LV0)}, {vr(LP)}, 0")
    a.e(f"v_mfma_f32_32x32x16_bf16 {vr(LO,16)}, {vr(LV1)}, {vr(LP+4)}, {vr(LO,16)}")
    a.e(f"v_mfma_f32_32x32x16_bf16 {vr(LO,16)}, {vr(LVP)}, {vr(LP+8)}, {vr(LO,16)}")
    a.e("s_lshl_b32 s75, s67, 6")
    a.e("s_add_u32 s75, s75, s40")
    a.e("s_add_u32 s75, s75, 32")
    a.e("s_lshl_b32 s75, s75, 10")
    a.e(f"s_add_u32 s75, s75, {OF:#x}")
    a.nop(7)
    a.e(f"v_rcp_f32 v85, v{LO+8}")
    a.e("s_nop 0")
    for r in range(8):
        a.e(f"v_mul_f32 v{LO+r}, v85, v{LO+r}")
    for r in range(4):
        a.e(f"v_cvt_pk_bf16_f32 v{108+r}, v{LO+2*r}, v{LO+2*r+1}")
    a.vmem("buffer_store_dwordx4 v[108:111], v2, s[28:31], s75 offen", "st")
    pf.finish(44, 28)
    a.e("K2_END:")
    a.e("s_endpgm")
    return a, 256, (102 if opt.get('prof') else 80)


def gen_k3(opt):
    a = Asm()
    a.e("s_cmp_ge_u32 s2, 256")
    a.e("s_cbranch_scc1 K3_END")
    pf = Prof(a, opt.get("prof"), 2)
    pf.start()
    a.e("s_load_dwordx2 s[16:17], s[0:1], 56")
    a.e("s_load_dwordx2 s[18:19], s[0:1], 72")
    a.e("s_and_b32 s40, s2, 7")
    a.e("s_lshr_b32 s41, s2, 3")
    a.e("s_lshl_b32 s40, s40, 2")
    a.e("s_and_b32 s42, s41, 3")
    a.e("s_add_u32 s40, s40, s42")
    a.e("s_lshr_b32 s41, s41, 2")
    a.e("v_lshrrev_b32 v2, 6, v0")
    a.e("v_and_b32 v1, 63, v0")
    a.e("v_readfirstlane_b32 s44, v2")
    a.e("v_lshlrev_b32 v2, 4, v1")
    a.e("s_nop 1")
    a.e("s_lshr_b32 s45, s44, 1")
    a.e("s_and_b32 s46, s44, 1")
    a.e("s_lshl_b32 s47, s40, 1")
    a.e("s_add_u32 s48, s47, s45")
    a.e("s_xor_b32 s49, s48, 1")
    a.e("s_lshl_b32 s50, s45, 5")
    a.e("s_lshl_b32 s51, s46, 4")
    a.e("s_add_u32 s50, s50, s51")
    a.e("s_lshl_b32 s52, s48, 6")
    a.e("s_add_u32 s52, s52, s50")
    a.e("s_lshl_b32 s52, s52, 10")
    a.e(f"s_add_u32 s52, s52, {OF:#x}")
    a.e("s_lshl_b32 s53, s49, 6")
    a.e("s_add_u32 s53, s53, s50")
    a.e("s_lshl_b32 s53, s53, 10")
    a.e(f"s_add_u32 s53, s53, {OF:#x}")
    a.e("s_lshl_b32 s47, s41, 1")
    a.e("s_add_u32 s54, s47, s46")
    a.e("s_xor_b32 s55, s54, 1")
    a.e("s_lshl_b32 s47, s45, 4")
    a.e("s_add_u32 s56, s54, s47")
    a.e("s_lshl_b32 s56, s56, 5")
    a.e("s_add_u32 s56, s56, s51")
    a.e("s_lshl_b32 s56, s56, 10")
    a.e(f"s_add_u32 s56, s56, {WOF:#x}")
    a.e("s_add_u32 s57, s55, s47")
    a.e("s_lshl_b32 s57, s57, 5")
    a.e("s_add_u32 s57, s57, s51")
    a.e("s_lshl_b32 s57, s57, 10")
    a.e(f"s_add_u32 s57, s57, {WOF:#x}")
    a.e("s_waitcnt lgkmcnt(0)")
    srd(a, 28, 18, WS_BYTES)
    srd(a, 32, 16, 2048 * 512 * 2)
    a.e("v_and_b32 v3, 31, v1")
    a.e("v_lshlrev_b32 v4, 2, v3")
    a.e("s_lshl_b32 s58, s48, 7")
    a.e(f"s_add_u32 s58, s58, {GATE:#x}")
    a.e("s_add_u32 s59, s58, 0x2000")

    ACC = 8
    def fr(ks, idx):
        n = ks * 16 + idx * 4
        if ks < 11:
            b = 72 + n
            return f"v[{b}:{b+3}]"
        b = n - 11 * 16
        return f"a[{b}:{b+3}]"

    def loads(ks):
        off = (ks & 3) * 1024
        for idx, sreg in enumerate((52, 56, 53, 57)):
            a.vmem(f"buffer_load_dwordx4 {fr(ks, idx)}, v2, s[28:31], s{sreg} offen offset:{off}", f"k{ks}")
        if ks & 3 == 3:
            for sreg in (52, 53, 56, 57):
                a.e(f"s_add_u32 s{sreg}, s{sreg}, 4096")

    def mm(ks):
        for i in range(2):
            for j in range(2):
                acc = ACC + (i * 2 + j) * 16
                cc = "0" if ks == 0 else vr(acc, 16)
                a.e(f"v_mfma_f32_32x32x16_bf16 {vr(acc,16)}, {fr(ks, 1+2*j)}, {fr(ks, 2*i)}, {cc}")

    PRE = 15
    for ks in range(PRE):
        loads(ks)
    pf.stamp()
    a.vmem("buffer_load_dword v5, v4, s[28:31], s58 offen", "g")
    a.vmem("buffer_load_dword v6, v4, s[28:31], s59 offen", "g")
    for ks in range(16):
        a.wait(vm=f"k{ks}")
        if ks in (0, 4, 8, 15):
            pf.stamp()
        mm(ks)
        if ks + PRE < 16:
            loads(ks + PRE)
    a.nop(8)
    for t in range(1, 4):
        a.e(f"s_xor_b32 s60, s44, {t}")
        a.e("s_mul_i32 s60, s60, 12288")
        a.e(f"v_add_u32 v7, s60, v2")
        for g in range(4):
            a.ds(f"ds_write_b128 v7, {vr(ACC+t*16+g*4)} offset:{(t-1)*4096+g*1024}", "w")
    a.e("s_mul_i32 s60, s44, 12288")
    a.e("v_add_u32 v7, s60, v2")
    a.wait(lg="w")
    a.e("s_barrier")
    pf.stamp()
    RB = 72
    for t in range(1, 4):
        for g in range(4):
            a.ds(f"ds_read_b128 {vr(RB+(t-1)*16+g*4)}, v7 offset:{(t-1)*4096+g*1024}", f"r{t}")
    a.wait(vm="g")
    a.e("s_cmp_eq_u32 s45, 0")
    a.e("s_cselect_b64 vcc, -1, 0")
    a.e("v_cndmask_b32 v120, v6, v5, vcc")
    a.e("v_cndmask_b32 v121, v5, v6, vcc")
    a.wait(lg="r1")
    for r in range(16):
        a.e(f"v_add_f32 v{ACC+r}, v{ACC+r}, v{RB+r}")
    a.wait(lg="r3")
    for r in range(16):
        a.e(f"v_add_f32 v{RB+16+r}, v{RB+16+r}, v{RB+32+r}")
    for r in range(0, 16, 2):
        x0, x1, y0, y1 = ACC + r, ACC + r + 1, RB + 16 + r, RB + 17 + r
        a.e(f"v_cvt_pk_bf16_f32 v122, v{x0}, v{x1}")
        a.e(f"v_cvt_pk_bf16_f32 v123, v{y0}, v{y1}")
        a.e(f"v_lshlrev_b32 v{x0}, 16, v122")
        a.e(f"v_and_b32 v{x1}, 0xffff0000, v122")
        a.e(f"v_lshlrev_b32 v{y0}, 16, v123")
        a.e(f"v_and_b32 v{y1}, 0xffff0000, v123")
        a.e(f"v_mul_f32 v{x0}, v120, v{x0}")
        a.e(f"v_mul_f32 v{x1}, v120, v{x1}")
        a.e(f"v_mul_f32 v{y0}, v121, v{y0}")
        a.e(f"v_mul_f32 v{y1}, v121, v{y1}")
        a.e(f"v_cvt_pk_bf16_f32 v122, v{x0}, v{x1}")
        a.e(f"v_cvt_pk_bf16_f32 v123, v{y0}, v{y1}")
        a.e(f"v_lshlrev_b32 v{x0}, 16, v122")
        a.e(f"v_and_b32 v{x1}, 0xffff0000, v122")
        a.e(f"v_lshlrev_b32 v{y0}, 16, v123")
        a.e(f"v_and_b32 v{y1}, 0xffff0000, v123")
        a.e(f"v_add_f32 v{x0}, v{x0}, v{y0}")
        a.e(f"v_add_f32 v{x1}, v{x1}, v{y1}")
        a.e(f"v_cvt_pk_bf16_f32 v{124+r//2}, v{x0}, v{x1}")
    a.e("v_lshlrev_b32 v3, 10, v3")
    a.e("v_lshrrev_b32 v4, 5, v1")
    a.e("v_lshl_add_u32 v3, v4, 5, v3")
    a.e("s_lshl_b32 s60, s48, 15")
    a.e("s_lshl_b32 s61, s54, 6")
    a.e("s_add_u32 s60, s60, s61")
    a.e("buffer_store_dwordx4 v[124:127], v3, s[32:35], s60 offen")
    a.e("buffer_store_dwordx4 v[128:131], v3, s[32:35], s60 offen offset:16")
    pf.finish(44, 28)
    a.e("K3_END:")
    a.e("s_endpgm")
    return a, 248 + 80, (102 if opt.get('prof') else 72)


def build(opt=None):
    opt = opt or {}
    ref = open(os.path.join(os.path.dirname(__file__), "..", "cdna_kernels", NAME + ".s.ref")).read()
    head = [l for l in ref.splitlines() if l.startswith(";") and "@launch" not in l and "Override launch" not in l
            and "grid=ceil" not in l]
    out = "\n".join(head) + "\n"
    out += "; @launch kernel=qkv_kernel grid=(256,1,1) block=(256,1,1) lds=163840\n"
    out += "; @launch kernel=attn_kernel grid=(256,1,1) block=(512,1,1) lds=81920\n"
    out += "; @launch kernel=oproj_kernel grid=(256,1,1) block=(256,1,1) lds=49152\n"
    out += '.amdgcn_target "amdgcn-amd-amdhsa--gfx950"\n'
    descs = ""
    ok = True
    for name, g in (("qkv_kernel", gen_k1), ("attn_kernel", gen_k2), ("oproj_kernel", gen_k3)):
        a, nv, ns = g(opt)
        probs = a.check(name)
        for p in probs:
            print("HAZARD", p)
            ok = False
        out += header(name) + a.text()
        accum = 248 if name == "oproj_kernel" else None
        descs += descriptor(name, nv, ns, accum)
    out += descs
    return out, ok


if __name__ == "__main__":
    opt = {}
    dst = os.path.join(os.path.dirname(__file__), "..", "cdna_kernels", NAME + ".s")
    for arg in sys.argv[1:]:
        if "=" in arg:
            k, v = arg.split("=")
            opt[k] = int(v)
        else:
            dst = arg
    txt, ok = build(opt)
    open(dst, "w").write(txt)
    print("wrote", dst, len(txt), "bytes", "hazards OK" if ok else "HAZARDS FOUND")
```

```python
import re

TRANS = ("v_exp_f32", "v_log_f32", "v_rcp_f32", "v_rsq_f32", "v_sqrt_f32", "v_sin_f32", "v_cos_f32",
         "v_rcp_iflag_f32", "v_exp_f16", "v_rcp_f16")

_reg_re = re.compile(r"^(-?)(?:abs\()?\|?([vsa])(?:(\d+)|\[(\d+):(\d+)\])\|?\)?$")


def parse_reg(tok):
    tok = tok.strip()
    if tok in ("vcc", "exec", "m0", "scc"):
        return [(tok, 0)]
    if tok in ("vcc_lo", "vcc_hi"):
        return [("vcc", 0)]
    if tok in ("exec_lo", "exec_hi"):
        return [("exec", 0)]
    m = _reg_re.match(tok)
    if not m:
        return []
    k = m.group(2)
    if m.group(3) is not None:
        return [(k, int(m.group(3)))]
    return [(k, i) for i in range(int(m.group(4)), int(m.group(5)) + 1)]


class Ins:
    def __init__(self, text):
        self.text = text
        t = text.split(";")[0].strip()
        self.is_label = t.endswith(":")
        self.is_dir = t.startswith(".")
        parts = t.split(None, 1)
        self.op = parts[0] if parts else ""
        self.ops = []
        if len(parts) > 1 and not self.is_label and not self.is_dir:
            depth = 0
            cur = ""
            for ch in parts[1]:
                if ch == "[":
                    depth += 1
                if ch == "]":
                    depth -= 1
                if ch == "," and depth == 0:
                    self.ops.append(cur.strip())
                    cur = ""
                else:
                    cur += ch
            self.ops.append(cur.strip())
            last = self.ops[-1].split()
            self.mods = last[1:]
            self.ops[-1] = last[0] if last else ""
        else:
            self.mods = []
        self.classify()

    def classify(self):
        op = self.op
        op = re.sub(r"_(e32|e64|sdwa|dpp)$", "", op)
        self.base = op
        self.defs = []
        self.uses = []
        self.kind = "other"
        R = [parse_reg(o) for o in self.ops]
        if self.is_label or self.is_dir or not op:
            self.kind = "none"
            return
        if op.startswith("v_mfma") or op.startswith("v_smfmac"):
            self.kind = "mfma"
            self.defs = R[0]
            self.srcA, self.srcB = R[1], R[2]
            self.srcC = R[3] if len(R) > 3 else []
            if op.startswith("v_smfmac"):
                self.srcB = self.srcB + self.srcC
                self.srcC = R[0]
            self.uses = self.srcA + self.srcB + self.srcC
            self.passes = 8 if "32x32" in op else 4
            return
        if op.startswith("v_"):
            self.kind = "valu"
            self.trans = op in TRANS
            if op.startswith("v_cmp"):
                self.defs = R[0]
                self.uses = sum(R[1:], [])
                if op.startswith("v_cmpx"):
                    self.defs = self.defs + [("exec", 0)]
            elif op.startswith("v_permlane") and op.endswith("swap_b32"):
                self.defs = R[0] + R[1]
                self.uses = R[0] + R[1]
            elif op in ("v_add_co_u32", "v_sub_co_u32", "v_addc_co_u32", "v_subb_co_u32"):
                self.defs = R[0] + R[1]
                self.uses = sum(R[2:], [])
            elif op in ("v_fmac_f32", "v_dot2c_f32_bf16", "v_pk_fmac_f16"):
                self.defs = R[0]
                self.uses = sum(R, [])
            elif op == "v_cndmask_b32":
                self.defs = R[0]
                self.uses = sum(R[1:], [])
                if len(R) == 3:
                    self.uses += [("vcc", 0)]
            elif op == "v_nop":
                pass
            else:
                self.defs = R[0]
                self.uses = sum(R[1:], [])
            self.dpp = any(m.startswith(("quad_perm", "row_", "wave_")) for m in self.mods) or self.op.endswith("_dpp")
            return
        if op.startswith("buffer_") or op.startswith("global_"):
            self.kind = "vmem"
            self.is_store = "store" in op or "atomic" in op
            self.lds = "lds" in self.mods or "_lds_" in op
            if op.startswith("buffer_"):
                if self.lds:
                    self.uses = sum(R, []) + [("m0", 0)]
                elif self.is_store:
                    self.uses = sum(R, [])
                    self.data = R[0]
                else:
                    self.defs = R[0]
                    self.uses = sum(R[1:], [])
            else:
                if self.is_store:
                    self.uses = sum(R, [])
                    self.data = R[1]
                else:
                    self.defs = R[0]
                    self.uses = sum(R[1:], [])
            self.wide = self.is_store and ("x4" in op or "x3" in op)
            return
        if op.startswith("ds_"):
            self.kind = "ds"
            if op.startswith("ds_read") or op.startswith("ds_bpermute") or op.startswith("ds_permute") or op.startswith("ds_swizzle"):
                self.defs = R[0]
                self.uses = sum(R[1:], [])
            else:
                self.uses = sum(R, [])
            return
        if op.startswith("s_"):
            self.kind = "salu"
            if op in ("s_nop", "s_waitcnt", "s_barrier", "s_endpgm", "s_setprio", "s_branch", "s_sleep") or op.startswith("s_cbranch"):
                return
            if op.startswith("s_cmp"):
                self.uses = sum(R, [])
                return
            if op.startswith("s_load") or op.startswith("s_memtime") or op.startswith("s_memrealtime"):
                self.kind = "smem"
                self.defs = R[0]
                self.uses = sum(R[1:], [])
                return
            self.defs = R[0]
            self.uses = sum(R[1:], [])
            if "saveexec" in op:
                self.defs = self.defs + [("exec", 0)]
            return

    def states(self):
        if self.kind == "none":
            return 0
        if self.base == "s_nop":
            return int(self.ops[0], 0) + 1
        return 1


def vset(regs, kinds=("v", "a")):
    return set(r for r in regs if r[0] in kinds)


def check_hazards(instrs, name=""):
    probs = []
    real = [i for i in instrs if i.kind != "none"]
    n = len(real)
    for j, c in enumerate(real):
        dist = 0
        for i in range(j - 1, max(-1, j - 24), -1):
            p = real[i]
            need = 0
            why = ""
            pd = set(p.defs)
            cu = set(c.uses)
            cd = set(c.defs)
            if p.kind == "valu":
                vd = vset(pd)
                sd = set(r for r in pd if r[0] in ("s", "vcc"))
                if c.kind == "mfma" and vd & cu:
                    need, why = 2, "valu->mfma"
                if c.kind == "mfma" and ("exec", 0) in pd:
                    need, why = max(need, 4), "valu exec->mfma"
                if c.kind == "valu":
                    if p.trans and not c.trans and vd & (cu | cd):
                        need, why = max(need, 1), "trans->valu"
                    if c.base.startswith("v_permlane") and vd & cu:
                        need, why = max(need, 2), "valu->permlane"
                    if c.dpp and vd & cu:
                        need, why = max(need, 2), "valu->dpp"
                    if c.base in ("v_readfirstlane_b32", "v_readlane_b32") and vd & cu:
                        need, why = max(need, 1), "valu->readlane"
                    if sd & cu:
                        need, why = max(need, 2), "valu sgpr->valu"
                        if c.base in ("v_readlane_b32", "v_writelane_b32"):
                            need = max(need, 4)
                    if ("exec", 0) in pd and (c.dpp):
                        need, why = max(need, 5), "exec->dpp"
                    if ("exec", 0) in pd and c.base.startswith(("v_readlane", "v_readfirstlane", "v_permlane")):
                        need, why = max(need, 4), "cmpx->readlane"
                    if p.op.endswith("_sdwa") and vd & (cu | cd):
                        need, why = max(need, 1), "sdwa->valu"
                if p.trans and c.kind in ("vmem", "ds") and vd & cu:
                    need, why = max(need, 1), "trans->mem"
                if c.kind == "vmem" and sd & cu:
                    need, why = max(need, 5), "valu sgpr->vmem"
                if c.kind in ("salu", "smem") and sd & cu:
                    need, why = max(need, 1), "valu sgpr->salu(pad)"
            if p.kind == "mfma":
                big = {4: 8, 8: 12}[p.passes]
                ovl = {4: 6, 8: 10}[p.passes]
                war = {4: 3, 8: 7}[p.passes]
                if c.kind == "mfma":
                    if pd & (set(c.srcA) | set(c.srcB)):
                        need, why = max(need, big), "mfma D->A/B"
                    if pd & set(c.srcC):
                        if set(c.srcC) == pd and c.passes == p.passes:
                            pass
                        else:
                            need, why = max(need, ovl), "mfma D->C overlap"
                    elif pd & cd:
                        need, why = max(need, ovl), "mfma WAW"
                elif c.kind in ("valu", "vmem", "ds"):
                    if pd & (cu | cd):
                        need, why = max(need, big), "mfma D->valu/mem"
                    if c.kind in ("valu", "vmem", "ds") and set(p.srcC) & cd:
                        need, why = max(need, war), "mfma C WAR"
            if p.kind == "vmem" and getattr(p, "wide", False):
                if set(p.data) & cd:
                    need, why = max(need, 2 if c.kind == "valu" else 1), "store data WAR"
            if p.kind == "salu" and ("m0", 0) in pd and c.kind == "vmem" and c.lds:
                need, why = max(need, 1), "m0->lds dma"
            if dist < need:
                probs.append(f"{name}: need {need} have {dist} ({why}): [{p.text.strip()}] -> [{c.text.strip()}]")
            dist += p.states()
            if dist >= 20:
                break
    return probs


def check_pending(instrs, name=""):
    probs = []
    vm, lg = [], []
    for c in instrs:
        if c.kind == "none":
            continue
        if c.base == "s_waitcnt":
            t = c.text
            m = re.search(r"vmcnt\((\d+)\)", t)
            if m:
                n = int(m.group(1))
                vm = vm[len(vm) - n:] if n < len(vm) else vm
                if n == 0:
                    vm = []
            m = re.search(r"lgkmcnt\((\d+)\)", t)
            if m:
                n = int(m.group(1))
                if any(k == "smem" for k, _, _ in lg) and n > 0:
                    pass
                else:
                    lg = lg[len(lg) - n:] if n < len(lg) else lg
                if n == 0:
                    lg = []
            continue
        touched = set(c.uses) | set(c.defs)
        for q in (vm, lg):
            for k, d, t in q:
                if d & touched and not (c.kind == k and not (d & set(c.uses)) and k != "smem"):
                    probs.append(f"{name}: pending load [{t.strip()}] touched by [{c.text.strip()}]")
        if c.kind == "vmem":
            vm.append(("vmem", set(c.defs), c.text))
        elif c.kind == "ds":
            lg.append(("ds", set(c.defs), c.text))
        elif c.kind == "smem":
            lg.append(("smem", set(c.defs), c.text))
    return probs


def linearize(lines, skip):
    out, off = [], 0
    for l in lines:
        t = l.strip()
        if t.startswith("; BEGIN ") and t[8:] in skip:
            off += 1
        elif t.startswith("; END ") and t[6:] in skip:
            off -= 1
        elif not off:
            out.append(l)
    return out


class Asm:
    def __init__(self):
        self.lines = []
        self.vm = []
        self.lg = []

    def e(self, text):
        for t in text.split("\n"):
            if t.strip():
                self.lines.append("    " + t.strip() if not t.strip().endswith(":") else t.strip())

    def c(self, text):
        self.lines.append("    ; " + text)

    def vmem(self, text, tag):
        self.e(text)
        self.vm.append(tag)

    def ds(self, text, tag):
        self.e(text)
        self.lg.append(tag)

    def _cnt(self, lst, tags):
        if isinstance(tags, str):
            tags = [tags]
        last = -1
        for i, t in enumerate(lst):
            if t in tags:
                last = i
        return last

    def wait(self, vm=None, lg=None, extra=""):
        parts = []
        if vm is not None:
            last = self._cnt(self.vm, vm)
            if last >= 0:
                n = len(self.vm) - 1 - last
                assert n <= 63, n
                parts.append(f"vmcnt({n})")
                self.vm = self.vm[last + 1:]
        if lg is not None:
            last = self._cnt(self.lg, lg)
            if last >= 0:
                n = len(self.lg) - 1 - last
                if n > 15:
                    n = 15
                    raise AssertionError("lgkmcnt overflow")
                parts.append(f"lgkmcnt({n})")
                self.lg = self.lg[last + 1:]
        if parts:
            self.e("s_waitcnt " + " ".join(parts))
            return True
        return False

    def wait_all(self):
        self.e("s_waitcnt vmcnt(0) lgkmcnt(0)")
        self.vm = []
        self.lg = []

    def nop(self, n):
        while n > 0:
            k = min(n, 16)
            self.e(f"s_nop {k-1}")
            n -= k

    def text(self):
        return "\n".join(self.lines) + "\n"

    def check(self, name="", paths=None):
        probs = check_hazards([Ins(l) for l in self.lines], name)
        for pname, skip in (paths or {}).items():
            ins = [Ins(l) for l in linearize(self.lines, skip)]
            probs += check_hazards(ins, pname) + check_pending(ins, pname)
        return sorted(set(probs))


def descriptor(name, vgpr, sgpr, accum=None, denorm=False):
    if accum is None:
        accum = (vgpr + 3) // 4 * 4
    s = f""".section .rodata,"a"
.p2align 6
.amdhsa_kernel {name}
  .amdhsa_next_free_vgpr {vgpr}
  .amdhsa_next_free_sgpr {sgpr}
  .amdhsa_accum_offset {accum}
  .amdhsa_group_segment_fixed_size 0
  .amdhsa_kernarg_size 80
  .amdhsa_user_sgpr_count 2
  .amdhsa_user_sgpr_kernarg_segment_ptr 1
  .amdhsa_system_sgpr_workgroup_id_x 1
"""
    if denorm:
        s += "  .amdhsa_float_denorm_mode_32 3\n"
    s += ".end_amdhsa_kernel\n"
    return s


def header(name):
    return f""".text
.globl {name}
.p2align 8
.type {name},@function
{name}:
"""
```

```python
import math
import struct
import sys
import os
sys.path.insert(0, os.path.dirname(__file__))
from asmlib import Asm, descriptor, header

NAME = "gated_mix__mha_block__sliding_local_dilated__prompt"

KVA = 0x000000
HALO = 0x600000
OF = 0xC00000
FL = 0x1000000
GT = FL + 0xC000
F_A, F_H, F_OB = FL + 0x20000, FL + 0x40000, FL + 0x60000
FSH = 7
PROF = 0x1800000
WS_BYTES = 268435456
SPIN = 1 << 16

SLOT = 24576
WQ = 98304
WBR = [73728, 0, 24576, 98304, 122880]
CTR = 65536
QX = 57344
WOA, WOB = 0, 98304
CMB = 77824
RED = 98304
WROW = 64 * 3072


def f32bits(x):
    return struct.unpack("<I", struct.pack("<f", x))[0]


QSCALE = f32bits(0.25 * math.log2(math.e))
NEGBIG = f32bits(-1.0e30)


def vr(b, n=4):
    return f"v[{b}:{b+n-1}]"


def srd(a, d, base, nbytes):
    a.e(f"s_mov_b32 s{d}, s{base}")
    a.e(f"s_mov_b32 s{d+1}, s{base+1}")
    a.e(f"s_mov_b32 s{d+2}, {nbytes:#x}")
    a.e(f"s_mov_b32 s{d+3}, 0x20000")


class Prof:
    def __init__(self, a, on):
        self.a, self.on = a, on

    def stamp(self, i, rt=False):
        if not self.on:
            return
        a = self.a
        rt = rt or self.on >= 2
        a.e(f"s_mem{'real' if rt else ''}time s[98:99]")
        a.e("s_waitcnt lgkmcnt(0)")
        if i < 2:
            a.e(f"s_mov_b32 s{100+i}, s98")
        else:
            a.e(f"v_writelane_b32 v0, s98, {i}")
        a.lg = []

    def finish(self):
        if not self.on:
            return
        a = self.a
        a.e("s_waitcnt vmcnt(0)")
        self.stamp(14)
        self.stamp(15, True)
        a.e("v_writelane_b32 v0, s100, 0")
        a.e("v_writelane_b32 v0, s101, 1")
        a.e("s_mov_b64 exec, 0xffff")
        a.e("v_lshlrev_b32 v24, 2, v1")
        a.e("s_lshl_b32 s98, s2, 3")
        a.e("s_add_u32 s98, s98, s63")
        a.e("s_lshl_b32 s98, s98, 6")
        a.e(f"s_add_u32 s98, s98, {PROF:#x}")
        a.e("buffer_store_dword v0, v24, s[28:31], s98 offen")


def gen(opt):
    a = Asm()
    pf = Prof(a, opt.get("prof"))
    uid = [0]
    SLP = opt.get("sleep", 2)

    cold = Asm()

    def spin_tail(L, D):
        cold.e("s_add_u32 s78, s78, 1")
        cold.e(f"s_cmp_lt_u32 s78, {SPIN}")
        cold.e(f"s_cbranch_scc1 {L}")
        cold.e(f"s_branch {D}")

    def poll_issue(vaddr, soff, tmp, tag):
        a.vmem(f"buffer_load_dwordx2 {vr(tmp,2)}, v{vaddr}, s[28:31], {soff} offen sc1", tag)

    def poll_check(vaddr, soff, tmp, tag, gate=False):
        uid[0] += 1
        L, D = f"POLL{uid[0]}", f"POLLD{uid[0]}"
        cmp = f"v_cmp_ne_u32 vcc, s76, v{tmp+1}" if gate else f"v_cmp_ne_u64 vcc, s[76:77], {vr(tmp,2)}"
        a.wait(vm=tag)
        a.e(cmp)
        a.e(f"s_cbranch_vccnz {L}_S")
        a.e(f"{D}:")
        cold.e(f"{L}_S:")
        cold.e("s_mov_b32 s78, 0")
        cold.e(f"{L}:")
        cold.e(f"buffer_load_dwordx2 {vr(tmp,2)}, v{vaddr}, s[28:31], {soff} offen sc1")
        cold.e("s_waitcnt vmcnt(0)")
        cold.e(cmp)
        cold.e(f"s_cbranch_vccz {D}")
        cold.e(f"s_sleep {SLP}")
        spin_tail(L, D)

    def poll_inline(vaddr, soff, tmp, sleep=0):
        uid[0] += 1
        L, D = f"POLL{uid[0]}", f"POLLD{uid[0]}"
        a.e("s_mov_b32 s78, 0")
        a.e(f"{L}:")
        if sleep:
            a.e(f"s_sleep {sleep}")
        a.e(f"buffer_load_dwordx2 {vr(tmp,2)}, v{vaddr}, s[28:31], {soff} offen sc1")
        a.e("s_add_u32 s78, s78, 1")
        a.e(f"s_cmp_lt_u32 s78, {SPIN}")
        a.e("s_cselect_b64 s[96:97], -1, 0")
        a.e("s_waitcnt vmcnt(0)")
        a.e(f"v_cmp_ne_u64 vcc, s[76:77], {vr(tmp,2)}")
        a.e("s_nop 0")
        a.e("s_and_b64 s[96:97], vcc, s[96:97]")
        a.e(f"s_cbranch_scc1 {L}")
        a.vm = []

    def tag_issue(tmp, vz):
        a.vmem(f"buffer_load_dwordx2 {vr(tmp,2)}, v{vz}, s[32:35], 0 offen sc1", "tag")

    def tag_check(tmp, vz):
        uid[0] += 1
        L, D = f"TAG{uid[0]}", f"TAGD{uid[0]}"
        a.wait(vm="tag")
        a.e(f"v_readfirstlane_b32 s76, v{tmp}")
        a.e(f"v_readfirstlane_b32 s77, v{tmp+1}")
        a.e("s_nop 1")
        a.e("s_cmp_eq_u32 s76, 0")
        a.e(f"s_cbranch_scc1 {L}_S")
        a.e(f"{D}:")
        cold.e(f"{L}_S:")
        cold.e("s_mov_b32 s78, 0")
        cold.e(f"{L}:")
        cold.e(f"s_sleep {SLP}")
        cold.e(f"buffer_load_dwordx2 {vr(tmp,2)}, v{vz}, s[32:35], 0 offen sc1")
        cold.e("s_waitcnt vmcnt(0)")
        cold.e(f"v_readfirstlane_b32 s76, v{tmp}")
        cold.e(f"v_readfirstlane_b32 s77, v{tmp+1}")
        cold.e("s_nop 1")
        cold.e("s_cmp_lg_u32 s76, 0")
        cold.e(f"s_cbranch_scc1 {D}")
        spin_tail(L, D)

    def flag_store(soff, t):
        a.e(f"v_mov_b32 v{t}, s76")
        a.e(f"v_mov_b32 v{t+1}, s77")
        a.e(f"v_mov_b32 v{t+2}, 0")
        a.e("s_mov_b64 exec, 1")
        a.vmem(f"buffer_store_dwordx2 {vr(t,2)}, v{t+2}, s[28:31], {soff} offen sc1", "fl")
        a.e("s_mov_b64 exec, -1")

    Q, C, O = 8, 16, 48
    SB = [80, 96, 112]
    KV, NBP = 128, 4
    NQ = 2
    NKG = opt.get("nkg", 32)
    NKT = {"G": NKG, "L": 64 - NKG}
    PKB = 232
    NF = opt.get("nf", 1)

    def ones_init(b, src):
        return [f"v_mov_b32 v{KV+b*12+4+r}, v{src}" for r in range(8)]

    def wo_addr():
        a.e("v_bfe_u32 v232, v1, 2, 2")
        a.e("v_lshl_add_u32 v233, v4, 2, v232")
        a.e("v_lshlrev_b32 v233, 7, v233")
        a.e("v_and_b32 v234, 1, v1")
        a.e("v_lshlrev_b32 v234, 2, v234")
        a.e("v_bfe_u32 v235, v1, 1, 1")
        a.e("v_add_u32 v234, v234, v235")
        a.e("v_bfe_u32 v235, v1, 4, 1")
        a.e("v_lshl_add_u32 v234, v235, 1, v234")
        a.e("s_and_b32 s47, s65, 1")
        a.e("s_lshl_b32 s47, s47, 1")
        a.e("v_xor_b32 v234, s47, v234")
        a.e("v_and_b32 v235, 1, v234")
        a.e("v_lshl_add_u32 v233, v235, 3, v233")
        a.e("v_lshrrev_b32 v234, 1, v234")
        a.e("v_bfe_u32 v235, v1, 3, 1")
        a.e("s_lshr_b32 s47, s65, 1")
        a.e("v_xor_b32 v235, s47, v235")
        a.e("v_lshl_add_u32 v234, v235, 2, v234")
        a.e("v_lshl_add_u32 v233, v234, 4, v233")
        a.e("s_lshl_b32 s47, s65, 14")
        a.e("v_add_u32 v232, s47, v233")
        a.e("v_xor_b32 v233, 64, v232")
        a.e(f"v_add_u32 v234, {WOB}, v232")
        a.e(f"v_add_u32 v235, {WOB}, v233")
        a.e("v_and_b32 v224, 3, v1")
        a.e(f"v_lshlrev_b32 v224, {FSH}, v224")

    def attn_vsetup(role):
        a.e("v_cmp_gt_u32 vcc, 32, v1")
        a.e("v_mov_b32 v92, 0x3f80")
        a.e("v_mov_b32 v227, v30")
        a.e("v_cndmask_b32 v80, 0, v92, vcc")
        for r in (81, 82, 83, 85, 86, 87, 89, 90, 91):
            a.e(f"v_mov_b32 v{r}, 0")
        a.e("v_lshlrev_b32 v225, 3, v5")
        a.e("v_lshrrev_b32 v226, 3, v1")
        a.e("v_lshlrev_b32 v226, 10, v226")
        a.e("v_bfe_u32 v92, v1, 4, 1")
        a.e("v_lshlrev_b32 v92, 2, v92")
        a.e("v_and_b32 v93, 7, v1")
        a.e("v_xor_b32 v92, v92, v93")
        a.e("v_lshl_add_u32 v226, v92, 4, v226")
        if role == "G":
            a.e(f"v_mov_b32 v224, {CTR}")
        else:
            wo_addr()
            a.e("s_mul_i32 s47, s44, 5120")
            a.e(f"s_add_u32 s47, s47, {CMB}")
            a.e("v_add_u32 v240, s47, v2")
            a.e("v_lshlrev_b32 v241, 3, v1")
            a.e("v_add_u32 v241, s47, v241")
            a.e("s_lshl_b32 s47, s44, 2")
            a.e(f"s_add_u32 s47, s47, {CTR+16}")
            a.e("v_mov_b32 v242, s47")
            a.e(f"v_mov_b32 v246, {CTR}")
            a.e("v_mov_b32 v247, 1")

    def wo_issue():
        a.e("s_add_u32 m0, s58, s56")
        a.e("s_lshl_b32 s57, s56, 3")
        a.e("s_add_u32 s57, s57, s59")
        a.vmem("buffer_load_dwordx4 v226, s[20:23], s57 offen lds", "wo")
        a.e("s_add_u32 s56, s56, 1024")

    def kb(kt):
        return KV + (kt % (2 * NBP)) * 12

    def load_pair(p, asm=None):
        t_ = asm or a
        for t in range(2):
            t_.vmem(f"buffer_load_dwordx4 {vr(kb(2*p+t))}, v6, s[28:31], s54 offen offset:{t*2048} sc1", f"k{2*p+t}")
        t_.e("s_mov_b64 exec, s[60:61]")
        for t in range(2):
            for m in range(2):
                t_.vmem(f"buffer_load_dwordx4 {vr(kb(2*p+t)+4+4*m)}, v3, s[28:31], s54 offen offset:{t*2048+1024+m*512} sc1", f"v{2*p+t}")
        t_.e("s_mov_b64 exec, -1")
        t_.e("s_add_u32 s54, s54, 4096")

    def first_loads():
        a.e("s_mov_b32 s54, s52")
        for p in range(NF):
            load_pair(p)

    def lds_check(vaddr, tmp, target, tag):
        uid[0] += 1
        L, D = f"LC{uid[0]}", f"LCD{uid[0]}"
        a.wait(lg=tag)
        a.e(f"v_cmp_gt_u32 vcc, {target}, v{tmp}")
        a.e(f"s_cbranch_vccnz {L}_S")
        a.e(f"{D}:")
        cold.e(f"{L}_S:")
        cold.e("s_mov_b32 s78, 0")
        cold.e(f"{L}:")
        cold.e(f"s_sleep {SLP}")
        cold.e(f"ds_read_b32 v{tmp}, v{vaddr}")
        cold.e("s_waitcnt lgkmcnt(0)")
        cold.e(f"v_cmp_gt_u32 vcc, {target}, v{tmp}")
        cold.e(f"s_cbranch_vccz {D}")
        cold.e("s_add_u32 s78, s78, 1")
        cold.e(f"s_cmp_lt_u32 s78, {SPIN*16}")
        cold.e(f"s_cbranch_scc1 {L}")
        cold.e(f"s_branch {D}")

    def attn_main(R, hooks):
        nkt = NKT[R]
        a.wait(vm="k0", lg="q")
        for j in range(NQ):
            a.e(f"v_mfma_f32_32x32x16_bf16 {vr(O+16*j,16)}, {vr(kb(0))}, {vr(Q+4*j)}, 0")
        for p in range(NF, NBP - 1):
            load_pair(p)
        if NF == NBP - 1:
            a.nop(11)
        elif NF == NBP - 2:
            a.nop(2)
        for j in range(NQ):
            o = O + 16 * j
            t = 92 + j
            a.e(f"v_max3_f32 v{t}, v{o}, v{o+1}, v{o+2}")
            for r in range(3, 15, 2):
                a.e(f"v_max3_f32 v{t}, v{t}, v{o+r}, v{o+r+1}")
            a.e(f"v_max_f32 v{t}, v{t}, v{o+15}")
            a.e(f"v_add_f32 v{t}, {f32bits(40.0):#x}, v{t}")
            bb = 84 + 4 * j
            a.e(f"v_cvt_pk_bf16_f32 v{bb}, -v{t}, 0")
            a.nop(2)
            a.e(f"v_mfma_f32_32x32x16_bf16 {vr(C+16*j,16)}, v[80:83], {vr(bb)}, 0")
        a.e(f"A_MAIN_{R}:")
        for r in range(32):
            a.e(f"v_mov_b32 v{O+r}, 0")
        tiles = [(kt, j) for kt in range(nkt) for j in range(NQ)]

        def qk(n):
            kt, j = tiles[n]
            return f"v_mfma_f32_32x32x16_bf16 {vr(SB[n%3],16)}, {vr(kb(kt))}, {vr(Q+4*j)}, {vr(C+16*j,16)}"

        def pv(n, m):
            kt, j = tiles[n]
            return f"v_smfmac_f32_32x32x32_bf16 {vr(O+16*j,16)}, {vr(kb(kt)+4+4*m)}, {vr(SB[n%3]+8*m,8)}, v7"

        pf.stamp(10)
        a.e(qk(0))
        a.e(qk(1))
        a.nop(11)
        NT = len(tiles)
        P1, P2, P3 = opt.get("p1", 3), opt.get("p2", 8), opt.get("p3", 13)
        for n in range(NT):
            kt, j = tiles[n]
            s = SB[n % 3]
            if n == 32:
                pf.stamp(11)
            if R == "L" and n in (8, 16, 48):
                pf.stamp({8: 6, 16: 7, 48: 8}[n])
            for i in range(16):
                if i == P1 and n > 0:
                    a.e(pv(n - 1, 1))
                if i == P2 and n + 2 < NT:
                    if tiles[n + 2][1] == 0:
                        a.wait(vm=f"k{tiles[n+2][0]}")
                    a.e(qk(n + 2))
                if i == P3:
                    if j == 0:
                        a.wait(vm=f"v{kt}")
                    a.e(pv(n, 0))
                if i == 6:
                    if n % 4 == 0 and n // 4 + NBP - 1 < nkt // 2:
                        load_pair(n // 4 + NBP - 1)
                    for h_ in hooks.get(n, []):
                        h_()
                a.e(f"v_exp_f32 v{s+i}, v{s+i}")
        T0 = SB[(NT + 1) % 3]
        a.e(f"v_mov_b32 v{T0}, {f32bits(2.0**100):#x}")
        a.e(f"v_mov_b32 v{T0+1}, 0")
        a.e(pv(NT - 1, 1))
        for r in range(8):
            a.e(f"v_fma_f32 v{T0+1}, v{O+r}, 0, v{T0+1}")
        a.e(f"v_cmp_lt_f32 s[96:97], v{O+8}, v{T0}")
        a.e(f"v_mov_b32 v{O+9}, v{C}")
        a.nop(2)
        pf.stamp(12)
        for r in range(8):
            a.e(f"v_fma_f32 v{T0+1}, v{O+16+r}, 0, v{T0+1}")
        a.e(f"v_cmp_lt_f32 s[50:51], v{O+24}, v{T0}")
        a.e(f"v_cmp_o_f32 vcc, v{T0+1}, v{T0+1}")
        a.e(f"v_mov_b32 v{O+25}, v{C+16}")
        a.e("s_and_b64 s[96:97], s[96:97], s[50:51]")
        a.e("s_and_b64 s[96:97], s[96:97], vcc")
        a.e("s_or_b64 s[96:97], s[96:97], s[94:95]")
        a.e("s_cmp_eq_u64 s[96:97], -1")
        a.e(f"s_cbranch_scc0 A_FBS_{R}")
        c_ = cold
        c_.e(f"A_FBS_{R}:")
        c_.e("s_waitcnt vmcnt(0) lgkmcnt(0)")
        c_.e(f"v_mov_b32 v80, {NEGBIG:#x}")
        c_.e(f"v_mov_b32 v81, {NEGBIG:#x}")
        c_.e("s_mov_b32 s54, s52")
        c_.e("s_mov_b32 s50, 0")
        c_.e(f"A_FB_{R}:")
        c_.e(f"buffer_load_dwordx4 {vr(kb(0))}, v6, s[28:31], s54 offen sc1")
        c_.e("s_waitcnt vmcnt(0)")
        for j in range(NQ):
            c_.e(f"v_mfma_f32_32x32x16_bf16 {vr(O+16*j,16)}, {vr(kb(0))}, {vr(Q+4*j)}, 0")
        c_.nop(12)
        for j in range(NQ):
            o = O + 16 * j
            for r in range(0, 16, 2):
                c_.e(f"v_max3_f32 v{80+j}, v{80+j}, v{o+r}, v{o+r+1}")
        c_.e("s_add_u32 s54, s54, 2048")
        c_.e("s_add_u32 s50, s50, 1")
        c_.e(f"s_cmp_lt_u32 s50, {nkt}")
        c_.e(f"s_cbranch_scc1 A_FB_{R}")
        for j in range(NQ):
            c_.e(f"v_mov_b32 v82, v{80+j}")
            c_.nop(2)
            c_.e(f"v_permlane32_swap_b32 v82, v{80+j}")
            c_.nop(2)
            c_.e(f"v_max_f32 v82, v82, v{80+j}")
            for r in range(16):
                c_.e(f"v_sub_f32 v{C+16*j+r}, 0, v82")
        for b in range(2 * NBP):
            for t in ones_init(b, 227):
                c_.e(t)
        c_.e("s_mov_b64 s[94:95], -1")
        c_.e("s_mov_b32 s54, s52")
        c_.e("s_mov_b32 s56, 0")
        c_.e("s_mov_b32 s26, 0")
        for p in range(NBP - 1):
            load_pair(p, c_)
        c_.e("s_waitcnt vmcnt(0)")
        c_.e(f"s_branch A_MAIN_{R}")

    a.e("s_cmp_ge_u32 s2, 256")
    a.e("s_cbranch_scc1 K_END")
    pf.stamp(0, True)
    pf.stamp(1)
    a.e("s_load_dwordx4 s[4:7], s[0:1], 0")
    a.e("s_load_dwordx4 s[36:39], s[0:1], 64")
    a.e("s_load_dwordx4 s[12:15], s[0:1], 32")
    a.e("s_load_dwordx4 s[16:19], s[0:1], 48")
    a.e("s_load_dwordx2 s[8:9], s[0:1], 16")
    a.e("s_memrealtime s[76:77]")
    a.e("s_and_b32 s47, s2, 7")
    a.e("s_lshr_b32 s48, s2, 3")
    a.e("s_and_b32 s40, s47, 3")
    a.e("s_lshl_b32 s40, s40, 3")
    a.e("s_and_b32 s80, s48, 7")
    a.e("s_add_u32 s40, s40, s80")
    a.e("s_lshr_b32 s41, s47, 2")
    a.e("s_lshl_b32 s41, s41, 2")
    a.e("s_lshr_b32 s81, s48, 3")
    a.e("s_add_u32 s41, s41, s81")
    a.e("s_lshr_b32 s42, s48, 2")
    a.e("s_lshl_b32 s43, s47, 2")
    a.e("s_and_b32 s51, s48, 3")
    a.e("s_add_u32 s43, s43, s51")
    a.e("v_lshrrev_b32 v2, 6, v0")
    a.e("v_and_b32 v1, 63, v0")
    a.e("v_readfirstlane_b32 s63, v2")
    a.e("v_lshlrev_b32 v2, 4, v1")
    a.e("v_lshrrev_b32 v4, 5, v1")
    a.e("v_and_b32 v5, 31, v1")
    a.e("v_mov_b32 v31, 0")
    a.e("s_and_b32 s44, s63, 3")
    a.e("s_cmp_lt_u32 s63, 4")
    a.e("s_cbranch_scc1 GEMM")

    def attn_ssetup(role):
        a.e("v_and_b32 v3, 15, v1")
        a.e("v_lshlrev_b32 v3, 4, v3")
        a.e("v_lshl_add_u32 v3, v4, 8, v3")
        a.e("v_and_b32 v6, 0x33, v1")
        a.e("v_bfe_u32 v7, v1, 2, 1")
        a.e("v_lshl_add_u32 v6, v7, 3, v6")
        a.e("v_bfe_u32 v7, v1, 3, 1")
        a.e("v_lshl_add_u32 v6, v7, 2, v6")
        a.e("v_lshlrev_b32 v6, 4, v6")
        k0 = 0 if role == "G" else NKG
        a.e("s_lshl_b32 s45, s40, 1")
        a.e("s_lshl_b32 s62, s41, 2")
        a.e("s_add_u32 s62, s62, s44")
        a.e(f"v_min_u32 v17, {NKT[role]-1}, v1")
        a.e(f"v_lshlrev_b32 v17, {FSH}, v17")
        a.e("s_lshr_b32 s48, s62, 1")
        a.e(f"s_lshl_b32 s48, s48, {6+FSH}")
        a.e(f"s_add_u32 s48, s48, {F_A + (k0 << FSH):#x}")
        a.e("s_lshl_b32 s52, s62, 17")
        a.e(f"s_add_u32 s52, s52, {KVA + k0*2048:#x}")
        a.e("s_lshl_b32 s49, s44, 11")
        a.e(f"s_add_u32 s49, s49, {QX}")
        a.e("s_mov_b32 s60, 0x0000ffff")
        a.e("s_mov_b32 s61, 0x0000ffff")
        a.e("v_and_b32 v30, 27, v1")
        a.e("v_cmp_eq_u32 vcc, 16, v30")
        a.e("v_mov_b32 v7, 0x3f803f80")
        a.e("s_lshl_b32 s58, s44, 14")
        a.e("v_cndmask_b32 v30, 0, v7, vcc")
        a.e("v_mov_b32 v7, 0xdddddddd")
        a.e(f"s_add_u32 s58, s58, {WOB if role == 'L' else WOA}")
        a.e("s_lshl_b32 s59, s44, 17")
        a.e("s_lshl_b32 s51, s42, 7")
        a.e("s_add_u32 s59, s59, s51")
        a.e("s_mov_b32 s56, 0")
        a.e("s_and_b32 s64, s63, 1")
        a.e("s_lshr_b32 s65, s63, 1")
        a.e("s_lshl_b32 s66, s43, 1")
        a.e("s_add_u32 s66, s66, s64")
        a.e("s_lshl_b32 s74, s45, 8")
        a.e(f"s_add_u32 s74, s74, {GT:#x}")
        a.e("s_lshl_b32 s67, s66, 6")
        a.e("s_lshl_b32 s68, s65, 3")
        a.e("s_add_u32 s67, s67, s68")
        a.e("s_lshl_b32 s67, s67, 10")
        a.e(f"s_add_u32 s67, s67, {OF:#x}")
        a.e("s_add_u32 s70, s67, 4096")
        a.e("s_add_u32 s68, s67, 0x8000")
        a.e("s_add_u32 s71, s68, 4096")
        a.e("s_lshl_b32 s69, s66, 4")
        a.e("s_lshl_b32 s47, s65, 2")
        a.e("s_add_u32 s69, s69, s47")
        a.e(f"s_lshl_b32 s69, s69, {FSH}")
        a.e(f"s_add_u32 s69, s69, {F_OB:#x}")
        a.e("s_lshl_b32 s73, s45, 6")
        a.e("s_add_u32 s73, s73, s62")
        a.e("s_lshl_b32 s73, s73, 10")
        a.e(f"s_add_u32 s73, s73, {OF:#x}")
        a.e("s_add_u32 s53, s73, 0x10000")
        a.e("s_lshl_b32 s72, s66, 15")
        a.e("s_add_u32 s72, s72, s51")
        a.e("s_lshr_b32 s47, s65, 1")
        a.e("s_lshl_b32 s47, s47, 6")
        a.e("s_add_u32 s72, s72, s47")
        a.e("s_and_b32 s47, s65, 1")
        a.e("s_lshl_b32 s47, s47, 4")
        a.e("s_add_u32 s72, s72, s47")

    def dma_addr(xv, wv):
        a.e("v_lshrrev_b32 v19, 3, v1")
        a.e("v_and_b32 v15, 7, v1")
        a.e("v_lshrrev_b32 v16, 4, v1")
        a.e("s_lshl_b32 s50, s44, 4")
        if xv is not None:
            a.e("s_lshl_b32 s49, s40, 6")
            a.e("s_add_u32 s49, s49, s50")
            a.e("v_add_u32 v12, s49, v19")
            a.e("v_lshlrev_b32 v12, 10, v12")
            a.e("v_xor_b32 v13, v15, v16")
            a.e("v_xor_b32 v14, 4, v13")
            a.e(f"v_lshl_add_u32 v{xv}, v13, 4, v12")
            a.e(f"v_lshl_add_u32 v{xv+1}, v14, 4, v12")
            a.e(f"v_add_u32 v{xv+1}, 0x2000, v{xv+1}")
        a.e("v_add_u32 v12, s50, v19")
        a.e("v_mul_u32_u24 v12, 0xc00, v12")
        a.e("v_and_b32 v13, 1, v16")
        a.e("v_lshlrev_b32 v13, 2, v13")
        a.e("v_xor_b32 v13, v15, v13")
        a.e(f"v_lshl_add_u32 v{wv}, v13, 4, v12")
        a.e("s_lshl_b32 s50, s41, 7")
        a.e(f"v_add_u32 v{wv}, s50, v{wv}")
        a.e(f"v_add_u32 v{wv+1}, 0x6000, v{wv}")

    def w_items(base, segs, wv, sd, so, m0b):
        L = []
        for k, seg in enumerate(segs):
            for i in range(2):
                L.append((f"s_add_u32 m0, s{m0b}, {base + k*8192 + i*1024 - seg*1024:#x}",
                          f"buffer_load_dwordx4 v{wv+i}, s[{sd}:{sd+3}], s{so} offen offset:{seg*1024} lds"))
        return L

    def w_adv(so):
        a.e(f"s_add_u32 s{so}, s{so}, {WROW:#x}")
        a.e(f"s_cmp_eq_u32 s{so}, {8*WROW:#x}")
        a.e(f"s_cselect_b32 s{so}, 0, s{so}")

    def rot_chunk(dst):
        a.e("s_lshl_b32 s81, s81, 1")
        a.e(f"s_add_u32 s{dst}, s80, s81")
        a.e(f"s_and_b32 s{dst}, s{dst}, {opt.get('rotmask', 7)}")

    def q_read():
        a.e("v_add_u32 v18, s49, v2")
        for j in range(NQ):
            a.ds(f"ds_read_b128 {vr(Q+4*j)}, v18 offset:{j*1024}", "q")

    def sb_arrive(vc, v1_, off=0):
        a.e("s_mov_b64 exec, 1")
        a.ds(f"ds_add_u32 v{vc}, v{v1_} offset:{off}", "sb")
        a.e("s_mov_b64 exec, -1")

    a.c("BEGIN loader")
    rot_chunk(82)
    dma_addr(8, 10)
    a.e("s_lshl_b32 s83, s44, 11")
    a.e("s_lshl_b32 s80, s82, 7")
    a.e(f"s_mul_i32 s81, s82, {WROW:#x}")
    a.e("s_mov_b32 s82, s81")
    a.e("s_mov_b32 s11, s81")
    a.e("s_waitcnt lgkmcnt(0)")
    srd(a, 20, 4, 2048 * 512 * 2)
    srd(a, 24, 6, 512 * 1536 * 2)

    def emit_items(items, tag):
        for m, l in items:
            a.e(m)
            a.e("s_nop 0")
            a.vmem(l, tag)

    def issue_a(c):
        base = (c % 3) * SLOT
        for i in range(2):
            a.e(f"s_add_u32 m0, s83, {base + i*1024:#x}")
            a.e("s_nop 0")
            a.vmem(f"buffer_load_dwordx4 v{8+i}, s[20:23], s80 offen lds", f"a{c}")
        a.e("s_add_u32 s80, s80, 128")
        a.e("s_and_b32 s80, s80, 0x3ff")
        emit_items(w_items(base + 8192, (1, 2), 10, 24, 81, 83), f"a{c}")
        w_adv(81)

    def issue_wb(c, wv=10):
        emit_items(w_items(WBR[c % 5], (0, 1, 2), wv, 84, 11, 83), f"b{c}")
        w_adv(11)

    def issue_q(c):
        emit_items(w_items(WQ + c * 8192, (0,), 10, 24, 82, 83), "wq")
        w_adv(82)

    issue_a(0)
    srd(a, 28, 38, WS_BYTES)
    srd(a, 32, 36, 256)
    srd(a, 84, 12, 512 * 1536 * 2)
    srd(a, 88, 16, 1024)
    a.e("s_lshl_b32 s47, s2, 3")
    a.e("s_add_u32 s47, s47, s63")
    a.e("s_cmp_eq_u32 s47, 4")
    a.e("s_cbranch_scc1 TAGPUB")
    a.e("TAGPUBD:")
    cold.e("TAGPUB:")
    cold.e("s_or_b32 s76, s76, 1")
    cold.e("v_mov_b32 v28, s76")
    cold.e("v_mov_b32 v29, s77")
    cold.e("s_mov_b64 exec, 1")
    cold.e("buffer_store_dwordx2 v[28:29], v31, s[32:35], 0 offen sc1")
    cold.e("s_mov_b64 exec, -1")
    cold.e("s_branch TAGPUBD")
    issue_a(1)
    Q0AT = opt.get("q0at", -1)
    if Q0AT == -1:
        issue_q(0)
    WB0AT = opt.get("wb0at", 0)
    if WB0AT == -1:
        issue_wb(0)
    a.e("s_lshl_b32 s92, s40, 6")
    a.e("s_lshl_b32 s47, s41, 3")
    a.e("s_add_u32 s92, s92, s47")
    a.e("s_lshl_b32 s47, s44, 1")
    a.e("s_add_u32 s92, s92, s47")
    a.e("s_lshl_b32 s10, s92, 3")
    a.e(f"s_add_u32 s10, s10, {GT:#x}")
    a.e("s_lshl_b32 s92, s92, 10")
    a.vmem("buffer_load_dwordx4 v[40:43], v2, s[88:91], 0 offen", "g")
    attn_ssetup("L")
    attn_vsetup("L")
    for b in range(2 * NBP):
        for t in ones_init(b, 30):
            a.e(t)

    def gate_compute():
        A = a.e
        for d in range(4):
            A(f"v_lshlrev_b32 v{44+2*d}, 16, v{40+d}")
            A(f"v_and_b32 v{45+2*d}, 0xffff0000, v{40+d}")
        for row in range(2):
            xb = 32 + row * 4
            acc = 56 + row
            for d in range(4):
                A(f"v_lshlrev_b32 v52, 16, v{xb+d}")
                A(f"v_and_b32 v53, 0xffff0000, v{xb+d}")
                A(f"v_mul_f32 v52, v52, v{44+2*d}")
                A(f"v_mul_f32 v53, v53, v{45+2*d}")
                A("v_cvt_pk_bf16_f32 v54, v52, v53")
                A("v_lshlrev_b32 v52, 16, v54")
                A("v_and_b32 v53, 0xffff0000, v54")
                if d == 0:
                    A(f"v_add_f32 v{acc}, v52, v53")
                else:
                    A(f"v_add_f32 v{acc}, v{acc}, v52")
                    A(f"v_add_f32 v{acc}, v{acc}, v53")

    def gate_compute2():
        A = a.e
        for mod in ("quad_perm:[1,0,3,2]", "quad_perm:[2,3,0,1]", "row_half_mirror", "row_mirror"):
            A("s_nop 1")
            A(f"v_add_f32_dpp v56, v56, v56 {mod} row_mask:0xf bank_mask:0xf")
            A(f"v_add_f32_dpp v57, v57, v57 {mod} row_mask:0xf bank_mask:0xf")
        A("s_nop 1")
        for row in range(2):
            for q in range(4):
                A(f"v_readlane_b32 s{88+row*4+q}, v{56+row}, {q*16}")
        A("s_nop 1")
        A("v_cmp_eq_u32 vcc, 0, v1")
        A("v_mov_b32 v52, s88")
        A("v_add_f32 v52, s89, v52")
        A("v_add_f32 v52, s90, v52")
        A("v_add_f32 v52, s91, v52")
        A("v_mov_b32 v53, s92")
        A("v_add_f32 v53, s93, v53")
        A("v_add_f32 v53, s94, v53")
        A("v_add_f32 v53, s95, v53")
        A("v_cndmask_b32 v52, v53, v52, vcc")
        A("v_cvt_pk_bf16_f32 v52, v52, v52")
        A("v_and_b32 v52, 0xffff0000, v52")
        A(f"v_mul_f32 v52, {f32bits(-math.log2(math.e)):#x}, v52")
        A("v_exp_f32 v52, v52")
        A("s_nop 0")
        A("v_add_f32 v52, 1.0, v52")
        A("v_rcp_f32 v52, v52")
        A("s_nop 0")
        A("v_cvt_pk_bf16_f32 v52, v52, v52")
        A("v_and_b32 v52, 0xffff0000, v52")
        A("v_sub_f32 v53, 1.0, v52")
        A("v_cvt_pk_bf16_f32 v236, v53, v52")
        A("v_lshlrev_b32 v238, 3, v1")
        A("s_mov_b64 s[94:95], 0")

    def gate_publish():
        a.e("v_mov_b32 v237, s76")
        a.e("s_mov_b64 exec, 3")
        a.vmem("buffer_store_dwordx2 v[236:237], v238, s[28:31], s10 offen sc1", "gs")
        a.e("s_mov_b64 exec, -1")

    for c in range(8):
        a.wait(vm=f"a{c}")
        a.e("s_barrier")
        if c in (0, 4):
            pf.stamp(2 if c == 0 else 3)
        SL2 = opt.get("sl2", 0)
        if SL2 and c % 2 == 0 and c // 2 < SL2:
            if c == 0:
                a.e("s_lshr_b32 s47, s2, 3")
                a.e("s_lshl_b32 s47, s47, 2")
                a.e("s_add_u32 s47, s47, s44")
                a.e("s_mul_i32 s47, s47, 12288")
                a.e("s_lshr_b32 s50, s41, 2")
                a.e("s_lshl_b32 s50, s50, 9")
                a.e("s_add_u32 s47, s47, s50")
                a.e("s_add_u32 s96, s12, s47")
                a.e("s_addc_u32 s97, s13, 0")
            else:
                a.e("s_waitcnt lgkmcnt(0)") if opt.get("sl2w", 0) else None
            for t in range(14):
                q_ = (c // 2) * 14 + t
                a.e(f"s_load_dword s93, s[96:97], {(q_ // 8) * 1024 + (q_ % 8) * 64}")
        SW = opt.get("swarm", 0)
        if SW and c in (1, 5) + ((3,) if SW == 64 else ()):
            a.e("s_lshl_b32 s47, s2, 2")
            a.e("s_add_u32 s47, s47, s44")
            if c in (1, 3):
                a.e("s_mul_i32 s47, s47, 1536")
                a.e("s_add_u32 s96, s12, s47")
                a.e("s_addc_u32 s97, s13, 0")
                for t in range(12):
                    a.e(f"s_load_dword s93, s[96:97], {t*128 + (64 if c == 3 else 0)}")
            else:
                a.e("s_lshl_b32 s47, s47, 9")
                for base in (8, 14):
                    a.e(f"s_add_u32 s96, s{base}, s47")
                    a.e(f"s_addc_u32 s97, s{base+1}, 0")
                    for t in range(4 if SW != 64 else 7):
                        a.e(f"s_load_dword s93, s[96:97], {t*(128 if SW != 64 else 64)}")
        if c == 2:
            a.vmem("buffer_load_dwordx4 v[32:35], v2, s[20:23], s92 offen", "g")
            a.vmem("buffer_load_dwordx4 v[36:39], v2, s[20:23], s92 offen offset:1024", "g")
        if c == WB0AT and opt.get("wbfirst", 0):
            issue_wb(0)
        if c + 2 < 8:
            issue_a(c + 2)
        if c == WB0AT and not opt.get("wbfirst", 0):
            issue_wb(0)
        if c == Q0AT:
            issue_q(0)
        if c == 5:
            for q_ in range(1, 3):
                issue_q(q_)
        if c == 6:
            for q_ in range(3, 6):
                issue_q(q_)
        if c == 7:
            for q_ in range(6, 8):
                issue_q(q_)
    a.wait(vm="wq")
    a.e("s_barrier")
    pf.stamp(4)
    a.e("s_waitcnt lgkmcnt(0)")
    tag_issue(58, 31)
    issue_wb(1)
    if opt.get("wb2l", 1):
        issue_wb(2)
    gate_compute()
    gate_compute2()
    tag_check(58, 31)
    a.e("v_mov_b32 v20, v10")
    a.e("v_mov_b32 v21, v11")
    a.e("s_barrier")
    pf.stamp(5)
    q_read()
    issue_wb(3, 20)
    a.wait(vm="b1")
    a.e("s_barrier")
    issue_wb(4, 20)
    a.wait(vm="b2")
    a.e("s_barrier")
    issue_wb(5, 20)
    a.wait(vm="b3")
    a.e("s_barrier")
    issue_wb(6, 20)
    a.wait(vm="b4")
    a.e("s_barrier")
    issue_wb(7, 20)
    a.wait(lg="q")
    poll_issue(17, "s48", 18, "pa")
    a.wait(vm="b5")
    a.e("s_barrier")
    a.wait(vm="b7")
    a.e("s_barrier")
    a.e("s_setprio 3")
    a.wait(vm="pa")
    a.e("v_cmp_ne_u64 vcc, s[76:77], v[18:19]")
    a.e("s_cbranch_vccz LPOLLD")
    a.c("BEGIN slow")
    poll_inline(17, "s48", 18, sleep=opt.get("psleep", 0))
    a.c("END slow")
    a.e("LPOLLD:")
    pf.stamp(9)
    first_loads()
    NTL = 2 * NKT["L"]
    GV = 128
    OBF = 160
    assert (NKT["L"] % 8) == 0

    def l_at11():
        gate_publish()

    def l_polls():
        a.vmem("buffer_load_dwordx2 v[228:229], v225, s[28:31], s74 offen sc1", "gl")
        a.vmem("buffer_load_dwordx2 v[230:231], v225, s[28:31], s74 offen offset:256 sc1", "gl")
        poll_issue(224, "s69", 244, "pb")

    def l_pf_issue():
        a.ds("ds_read_b32 v243, v242", "pf")

    def l_pf_check():
        lds_check(242, 243, 1, "pf")
        for j in range(2):
            a.ds(f"ds_read_b64 {vr(GV+12*j+8,2)}, v241 offset:{j*2560+2048}", "r0")
        for j in range(2):
            a.ds(f"ds_read_b128 {vr(GV+12*j)}, v240 offset:{j*2560}", f"r{j+1}")
            a.ds(f"ds_read_b128 {vr(GV+12*j+4)}, v240 offset:{j*2560+1024}", f"r{j+1}")

    def ob_loads(asm):
        for t in range(8):
            asm.e(f"buffer_load_dwordx4 {vr(152+4*t)}, v2, s[28:31], s{68 if t < 4 else 71} offen offset:{(t&3)*1024} sc1")

    def l_ob_try():
        a.wait(vm="pb")
        assert a.vm == []
        a.e("v_cmp_ne_u64 vcc, s[76:77], v[244:245]")
        a.e("s_mov_b32 s55, 0")
        a.e("s_cbranch_vccnz LOB_SKIP")
        ob_loads(a)
        a.e("s_mov_b32 s55, 1")
        a.e("LOB_SKIP:")

    hooks = {11: [l_at11], NTL - opt.get("lp1", 8): [l_polls], NTL - opt.get("lp2", 4): [l_ob_try], NTL - 3: [l_pf_issue], NTL - 1: [l_pf_check],
             NTL - 10: [lambda: a.ds("ds_read_b32 v243, v246", "sc")], NTL - 7: [lambda: lds_check(246, 243, 8, "sc")]}
    if opt.get("saw", 1):
        n_, g_ = 0, 0
        pat = {1: (2, 1), 2: (3, 3), 3: (1, 1), 4: (2, 2)}[opt.get("saw", 1)]
        while n_ < opt.get("lsawend", 40):
            hooks.setdefault(n_, []).append(lambda v_=3 - g_ % 4: a.e(f"s_setprio {v_}"))
            n_ += pat[g_ % 2]
            g_ += 1
        hooks.setdefault(n_, []).append(lambda: a.e("s_setprio 0"))
    else:
        for k_, v_ in ((opt.get("l2", 20), 2), (opt.get("l1", 38), 1), (opt.get("l0", 46), 0)):
            hooks.setdefault(k_, []).append(lambda v_=v_: a.e(f"s_setprio {v_}"))
    hooks.setdefault(NTL - 2, []).append(lambda: a.e("s_setprio 3"))
    hooks.setdefault(13, []).append(lambda: a.ds("ds_read_b32 v243, v246", "s5"))
    hooks.setdefault(15, []).append(lambda: lds_check(246, 243, 4, "s5"))
    wo_at = [n for n in range(17, NTL - 12) if n % 2 == 1]
    step_ = len(wo_at) / 16.0
    for k_ in range(16):
        hooks.setdefault(wo_at[int(k_ * step_)], []).append(wo_issue)
    srd(a, 20, 14, 512 * 512 * 2)
    attn_main("L", hooks)
    a.wait(vm="gl")
    a.e("v_cmp_ne_u32 vcc, s76, v229")
    a.e("v_cmp_ne_u32 s[96:97], s76, v231")
    a.wait(lg="r0") or a.e("s_nop 0")
    a.e("s_or_b64 s[96:97], s[96:97], vcc")
    a.e("s_cbranch_scc1 LGATE_S")
    a.e("LGATE_D:")
    cold.e("LGATE_S:")
    cold.e("s_mov_b32 s78, 0")
    cold.e("LGATE:")
    cold.e("buffer_load_dwordx2 v[228:229], v225, s[28:31], s74 offen sc1")
    cold.e("buffer_load_dwordx2 v[230:231], v225, s[28:31], s74 offen offset:256 sc1")
    cold.e("s_waitcnt vmcnt(0)")
    cold.e("v_cmp_ne_u32 vcc, s76, v229")
    cold.e("v_cmp_ne_u32 s[96:97], s76, v231")
    cold.e("s_nop 1")
    cold.e("s_or_b64 s[96:97], s[96:97], vcc")
    cold.e("s_cbranch_scc0 LGATE_D")
    spin_tail("LGATE", "LGATE_D")
    for j in range(2):
        g_, k_, t = GV + 12 * j, O + 16 * j, 16 + 4 * j
        a.e(f"v_min_f32 v{t}, v{g_+9}, v{k_+9}")
        a.e(f"v_sub_f32 v{t+1}, v{t}, v{g_+9}")
        a.e(f"v_sub_f32 v{t}, v{t}, v{k_+9}")
    for j in range(2):
        t = 16 + 4 * j
        a.e(f"v_exp_f32 v{t+1}, v{t+1}")
        a.e(f"v_exp_f32 v{t}, v{t}")
    for j in range(2):
        g_, k_, t = GV + 12 * j, O + 16 * j, 16 + 4 * j
        a.e(f"v_and_b32 v{t+3}, 0xffff0000, v{228+2*j}")
        a.e(f"v_mul_f32 v{t+2}, v{t+1}, v{g_+8}")
        a.e(f"v_fmac_f32 v{t+2}, v{t}, v{k_+8}")
    for j in range(2):
        t = 16 + 4 * j
        a.e(f"v_rcp_f32 v{t+2}, v{t+2}")
    a.e("s_nop 0")
    for j in range(2):
        g_, k_, t = GV + 12 * j, O + 16 * j, 16 + 4 * j
        a.e(f"v_mul_f32 v{t+2}, v{t+2}, v{t+3}")
        a.e(f"v_mul_f32 v{t+1}, v{t+1}, v{t+2}")
        a.e(f"v_mul_f32 v{t}, v{t}, v{t+2}")
        for r in range(8):
            a.e(f"v_mul_f32 v{k_+r}, v{t}, v{k_+r}")
        a.wait(lg=f"r{j+1}")
        for r in range(8):
            a.e(f"v_fmac_f32 v{k_+r}, v{t+1}, v{g_+r}")
        for r in range(4):
            a.e(f"v_cvt_pk_bf16_f32 v{24+4*j+r}, v{k_+2*r}, v{k_+2*r+1}")
        a.vmem(f"buffer_store_dwordx4 {vr(24+4*j)}, v2, s[28:31], s{73 if j == 0 else 53} offen sc1", "oa")
    pf.stamp(13)
    a.e("s_cmp_eq_u32 s55, 0")
    a.e("s_cbranch_scc1 LOB_LATE")
    a.e("s_waitcnt vmcnt(2)")
    a.e("s_branch PHASE3")
    cold.e("LOB_LATE:")
    cold.e("s_mov_b32 s78, 0")
    cold.e("LOB_L:")
    cold.e("buffer_load_dwordx2 v[244:245], v224, s[28:31], s69 offen sc1")
    cold.e("s_waitcnt vmcnt(0)")
    cold.e("v_cmp_ne_u64 vcc, s[76:77], v[244:245]")
    cold.e("s_cbranch_vccz LOB_D")
    cold.e("s_add_u32 s78, s78, 1")
    cold.e(f"s_cmp_lt_u32 s78, {SPIN}")
    cold.e("s_cbranch_scc1 LOB_L")
    cold.e("LOB_D:")
    ob_loads(cold)
    cold.e("s_waitcnt vmcnt(0)")
    cold.e("s_branch PHASE3")
    a.c("END loader")

    a.c("BEGIN gemm")
    a.e("GEMM:")
    a.vm = []
    a.lg = []
    if opt.get("cpf", 1):
        a.e("s_getpc_b64 s[88:89]")
        a.e("CPF_PC:")
        a.e(f"s_sub_u32 s88, s88, CPF_PC-{NAME}_kernel")
        a.e("s_subb_u32 s89, s89, 0")
        a.e("s_lshl_b32 s90, s48, 2")
        a.e("s_add_u32 s90, s90, s44")
        a.e("s_mul_i32 s90, s90, 320")
        a.e(f"s_min_u32 s90, s90, K_LAST-{NAME}_kernel-320")
        a.e("s_add_u32 s88, s88, s90")
        a.e("s_addc_u32 s89, s89, 0")
        for t in range(5):
            a.e(f"s_load_dword s{(91, 24, 25, 26, 27)[t]}, s[88:89], {t*64}")
    a.e("s_lshr_b32 s92, s44, 1")
    a.e("s_and_b32 s93, s44, 1")
    a.e("v_bfe_u32 v19, v1, 1, 3")
    a.e("v_xor_b32 v19, v19, v4")
    a.e("s_lshl_b32 s47, s92, 5")
    a.e("v_add_u32 v12, s47, v5")
    a.e("v_lshlrev_b32 v12, 7, v12")
    for ks in range(4):
        a.e(f"v_xor_b32 v13, {ks*2}, v19")
        a.e(f"v_lshl_add_u32 v{8+ks}, v13, 4, v12")
    a.e("v_bfe_u32 v12, v1, 2, 2")
    a.e("v_lshl_add_u32 v13, v4, 3, v12")
    a.e("v_lshlrev_b32 v13, 7, v13")
    a.e("v_bfe_u32 v14, v1, 4, 1")
    a.e("v_lshlrev_b32 v14, 1, v14")
    a.e("v_bfe_u32 v15, v1, 1, 1")
    a.e("v_add_u32 v14, v14, v15")
    a.e("v_bfe_u32 v15, v1, 3, 1")
    a.e("v_xor_b32 v15, s93, v15")
    a.e("v_lshl_add_u32 v14, v15, 2, v14")
    a.e("v_lshl_add_u32 v13, v14, 4, v13")
    a.e("v_and_b32 v15, 1, v1")
    a.e("v_lshl_add_u32 v24, v15, 3, v13")
    a.e("v_add_u32 v25, 0xc000, v24")
    a.e("v_add_u32 v26, 0x18000, v24")
    a.e("v_add_u32 v27, 0x24000, v24")
    a.e("s_lshl_b32 s10, s40, 1")
    a.e("s_add_u32 s10, s10, s92")
    a.e("s_lshl_b32 s11, s41, 1")
    a.e("s_add_u32 s11, s11, s93")
    a.e("s_lshl_b32 s82, s11, 18")
    a.e("s_lshl_b32 s83, s10, 11")
    a.e("s_add_u32 s82, s82, s83")
    a.e("s_add_u32 s83, s82, 0x20000")
    a.e("s_lshl_b32 s80, s93, 12")
    a.e("s_lshl_b32 s47, s92, 10")
    a.e("s_add_u32 s80, s80, s47")
    a.e(f"s_add_u32 s80, s80, {QX}")
    a.e("v_bfe_u32 v12, v1, 4, 1")
    a.e("v_lshlrev_b32 v12, 17, v12")
    a.e("v_lshl_add_u32 v12, v4, 8, v12")
    a.e("v_and_b32 v13, 15, v1")
    a.e("v_lshl_add_u32 v16, v13, 4, v12")
    a.e(f"s_mov_b32 s85, {QSCALE:#x}")
    a.e("s_lshl_b32 s47, s11, 6")
    a.e("s_add_u32 s47, s47, s10")
    a.e(f"s_lshl_b32 s86, s47, {FSH}")
    a.e(f"s_add_u32 s86, s86, {F_A:#x}")
    a.e(f"s_add_u32 s3, s86, {F_H-F_A:#x}")
    a.e("s_lshl_b32 s87, s47, 12")
    a.e(f"s_add_u32 s87, s87, {HALO:#x}")
    a.e("s_cmp_eq_u32 s10, 0")
    a.e("s_cselect_b32 s47, 0, 4096")
    a.e("s_sub_u32 s79, s87, s47")
    a.e("s_lshl_b32 s75, s10, 8")
    a.e(f"s_add_u32 s75, s75, {GT:#x}")
    a.e("s_mov_b64 s[94:95], 0")
    a.e(f"v_mov_b32 v42, {CTR}")
    a.e("v_mov_b32 v43, 1")
    attn_ssetup("G")
    a.e("s_waitcnt lgkmcnt(0)")
    srd(a, 28, 38, WS_BYTES)
    srd(a, 32, 36, 256)
    srd(a, 20, 8, 512 * 512 * 2)
    if opt.get("s3", 0):
        a.e("s_lshr_b32 s47, s2, 3")
        a.e("s_lshl_b32 s47, s47, 2")
        a.e("s_add_u32 s47, s47, s44")
        a.e("s_cmp_lt_u32 s47, 48")
        a.e("s_cselect_b32 s24, s6, s12")
        a.e("s_cselect_b32 s25, s7, s13")
        a.e("s_cselect_b32 s50, 0, 48")
        a.e("s_sub_u32 s50, s47, s50")
        a.e("s_lshl_b32 s50, s50, 15")
        a.e("s_add_u32 s50, s50, 384")
        a.e("s_cmp_lt_u32 s41, 3")
        a.e(f"s_cselect_b32 s26, {512*1536*2:#x}, 0")
        a.e("s_mov_b32 s27, 0x20000")
        a.e("v_lshlrev_b32 v33, 10, v5")
        a.vmem("buffer_load_dword v32, v33, s[24:27], s50 offen", "s3")
    TCH = opt.get("touch", 0)
    if TCH:
        PSH = opt.get("psh", 12)
        a.e("s_lshr_b32 s47, s2, 3")
        a.e("s_lshl_b32 s47, s47, 2")
        a.e("s_add_u32 s47, s47, s44")
        a.e(f"s_lshl_b32 s50, s47, {PSH}")
        a.e(f"v_lshlrev_b32 v33, {PSH+7}, v1")
        k_ = 0
        for bit, base, size in ((1, 12, 512 * 1536 * 2), (2, 8, 512 * 512 * 2), (2, 14, 512 * 512 * 2), (4, 38, FL + 0x80000),
                                (8, 18, 2048 * 512 * 2)):
            if TCH & bit:
                srd(a, 24, base, size)
                a.vmem(f"buffer_load_dword v{34+k_}, v33, s[24:27], s50 offen", "s3")
                k_ += 1
    a.e("s_setprio 3")

    XR, ACC, WF = 128, 80, 44

    def waddr(off):
        b = off // 49152
        return 24 + b, off - b * 49152

    def wfrag(dst, base, ks):
        L = []
        for sec in range(2):
            r, o = waddr(base + ks * 2048 + sec * 512)
            L.append(f"ds_read_b64_tr_b16 {vr(dst+sec*2,2)}, v{r} offset:{o}")
        return L

    def mf(seg, st, w):
        acc = ACC + seg * 16
        x = vr(XR + st * 4)
        cc = "0" if st == 0 else vr(acc, 16)
        if seg < 2:
            return f"v_mfma_f32_32x32x16_bf16 {vr(acc,16)}, {vr(w)}, {x}, {cc}"
        return f"v_mfma_f32_32x32x16_bf16 {vr(acc,16)}, {x}, {vr(w)}, {cc}"

    def pack(seg, half, t):
        b = ACC + seg * 16 + half * 8
        if seg == 0:
            for r in range(8):
                a.e(f"v_mul_f32 v{b+r}, s85, v{b+r}")
        for r in range(4):
            a.e(f"v_cvt_pk_bf16_f32 v{t+r}, v{b+2*r}, v{b+2*r+1}")
        return t

    def rdA(st):
        if st >= 32:
            return []
        c, ks, fs = st // 4, st % 4, WF + (st % 4) * 8
        base = (c % 3) * SLOT
        return [f"ds_read_b128 {vr(XR + st*4)}, v{8+ks} offset:{base}"] + \
            wfrag(fs, base + 8192, ks) + wfrag(fs + 4, base + 16384, ks)

    a.e("s_barrier")
    pf.stamp(2)
    for st in range(2):
        for r in rdA(st):
            a.ds(r, f"f{st}")
    for st in range(32):
        c, ks = st // 4, st % 4
        a.wait(lg=f"f{st+1}" if (ks == 2 and c < 5) else f"f{st}")
        if ks == 2 and c < 7:
            a.e("s_barrier")
            if c == 3:
                pf.stamp(3)
        fs = WF + (st % 4) * 8
        Rd = rdA(st + 2)
        a.e(mf(1, st, fs))
        for r in Rd[:3]:
            a.ds(r, f"f{st+2}")
        a.e(mf(2, st, fs + 4))
        for r in Rd[3:]:
            a.ds(r, f"f{st+2}")
    pf.stamp(4)
    a.wait(vm="s3")
    a.nop(11)
    for half in range(2):
        t = pack(1, half, 32 + half * 4)
        a.vmem(f"buffer_store_dwordx4 {vr(t)}, v2, s[28:31], s{82+half} offen sc1", "st")
    for half in range(2):
        t = pack(2, half, 8 + half * 4)
        a.vmem(f"buffer_store_dwordx4 {vr(t)}, v16, s[28:31], s82 offen offset:{1024+half*512} sc1", "st")
    tag_issue(28, 31)
    a.e("s_barrier")
    a.e("v_lshl_add_u32 v18, v1, 2, v42")
    a.e("s_mov_b64 exec, 0xff")
    a.ds("ds_write_b32 v18, v31", "ci")
    a.e("s_mov_b64 exec, -1")

    def rdQ(st):
        return wfrag(WF + (st % 9) * 4, WQ + (st // 4) * 8192, st % 4) if st < 32 else []

    for st in range(6):
        for r in rdQ(st):
            a.ds(r, f"f{st}")
    for st in range(32):
        a.wait(lg=f"f{st}")
        a.e(mf(0, st, WF + (st % 9) * 4))
        for r in rdQ(st + 6):
            a.ds(r, f"f{st+6}")
    a.e("v_add_u32 v18, s80, v2")
    a.nop(11)
    for half in range(2):
        t = pack(0, half, 32 + half * 4)
        a.ds(f"ds_write_b128 v18, {vr(t)} offset:{half*2048}", "qw")
    a.wait(lg="qw")
    a.e("s_barrier")
    q_read()
    a.e(f"s_setprio {opt.get('bprio', 3)}")

    pend = []

    def queue_wb(c):
        for it in w_items(WBR[c % 5], (0, 1, 2), 40, 24, 90, 81):
            pend.append((it, f"b{c}"))
        pend.append(None)

    def drain(n):
        while pend and n > 0:
            it = pend.pop(0)
            if it is None:
                w_adv(90)
                continue
            a.e(it[0][0])
            a.e("s_nop 0")
            a.vmem(it[0][1], it[1])
            n -= 1
        if pend and pend[0] is None:
            pend.pop(0)
            w_adv(90)

    def sbar(target, vmtag, arrive=True, sleep=0, off=0):
        uid[0] += 1
        L = f"SB{uid[0]}"
        if vmtag:
            a.wait(vm=vmtag)
        a.e("s_waitcnt lgkmcnt(0)")
        a.lg = []
        if arrive:
            sb_arrive(42, 43)
        a.e("s_mov_b32 s78, 0")
        a.e(f"{L}:")
        if sleep:
            a.e(f"s_sleep {sleep}")
        a.e(f"ds_read_b32 v32, v42 offset:{off}")
        a.e("s_add_u32 s78, s78, 1")
        a.e("s_waitcnt lgkmcnt(0)")
        a.e("v_readfirstlane_b32 s47, v32")
        a.e(f"s_cmp_ge_u32 s78, {SPIN*16}")
        a.e(f"s_cselect_b32 s50, 0, {target}")
        a.e("s_cmp_lt_u32 s47, s50")
        a.e(f"s_cbranch_scc1 {L}")
        a.lg = []

    def rdB(st):
        if st >= 32:
            return []
        c, ks, fs = st // 4, st % 4, WF + (st % 3) * 12
        return sum((wfrag(fs + seg * 4, WBR[c % 5] + seg * 8192, ks) for seg in range(3)), [])

    PISS = opt.get("piss", 19)
    pf.stamp(7)
    for st in range(2):
        for r in rdB(st):
            a.ds(r, f"f{st}")
    for st in range(32):
        if st == opt.get("flagat", 2):
            tag_check(28, 31)
            flag_store("s86", 34)
            pf.stamp(5)
        a.wait(lg=f"f{st}")
        if st in (2, 6, 10, 14, 18, opt.get("lastbar", 22)):
            a.e("s_barrier")
        if st == PISS:
            poll_issue(17, "s48", 18, "pa")
        fs = WF + (st % 3) * 12
        Rd = rdB(st + 2)
        fill = ones_init(st - 17, 30) if 17 <= st < 25 else []
        for mi in range(3):
            a.e(mf(mi, st, fs + mi * 4))
            for r in Rd[mi * 2:(mi + 1) * 2]:
                a.ds(r, f"f{st+2}")
            for t in fill[mi * 3:(mi + 1) * 3]:
                a.e(t)
        if st == opt.get("pchk", 27):
            poll_check(17, "s48", 18, "pa")
            pf.stamp(9)
            first_loads()
    sb_arrive(42, 43)
    pf.stamp(6)
    a.e(f"s_setprio {opt.get('gprio', 3)}")
    a.nop(8)
    pack(1, 0, PKB + 8)
    pack(1, 1, PKB + 12)
    pack(2, 1, PKB + 20)
    pack(2, 0, PKB + 16)
    pack(0, 0, PKB)
    pack(0, 1, PKB + 4)
    attn_vsetup("G")
    a.e(f"s_sub_u32 s88, s3, {1 << FSH}")
    a.e("s_cmp_eq_u32 s10, 0")
    a.e("s_cselect_b32 s88, s3, s88")
    NTG = 2 * NKG
    srd(a, 24, 38, WS_BYTES)

    def g_at11():
        a.wait(vm="hs")
        flag_store("s3", 228)

    def g_halo(k):
        return lambda: a.vmem(f"buffer_store_dwordx4 {vr(PKB+(8, 12, 20)[k])}, v2, s[28:31], s87 offen offset:{k*1024} sc1", "hs")

    def g_sent():
        a.e("s_lshl_b32 s89, s10, 6")
        a.e("s_lshl_b32 s47, s11, 1")
        a.e("s_add_u32 s89, s89, s47")
        a.e("s_lshl_b32 s89, s89, 10")
        a.e(f"s_add_u32 s89, s89, {OF:#x}")
        for r in range(4):
            a.e(f"v_mov_b32 v{228+r}, -1")
        a.vmem("buffer_store_dwordx4 v[228:231], v2, s[24:27], s89 offen sc1", "sn")

    def g_sent2():
        a.vmem("buffer_store_dwordx4 v[228:231], v2, s[24:27], s89 offen offset:1024 sc1", "sn")

    def g_sent_done():
        a.wait(vm="sn")
        a.e("v_mov_b32 v228, 1")
        a.e("v_cndmask_b32 v228, v228, 0, s[94:95]")
        sb_arrive(224, 228)

    def g_hpoll():
        a.e("v_mov_b32 v230, 0")
        poll_issue(230, "s88", 228, "hp")

    def g_hload():
        poll_check(230, "s88", 228, "hp")
        for t in range(3):
            a.vmem(f"buffer_load_dwordx4 {vr(128+4*t)}, v2, s[28:31], s79 offen offset:{t*1024} sc1", "hl")
        poll_issue(225, "s75", 228, "gl")

    assert NKG % 8 == 0
    H0, HS = opt.get("h0", 6), opt.get("hstep", 4)
    hooks = {1: [lambda: a.ds("ds_read_b32 v228, v224", "s5")], 3: [lambda: lds_check(224, 228, 4, "s5")],
             H0: [g_halo(0)], H0 + HS: [g_halo(1)], H0 + 2 * HS: [g_halo(2)], H0 + 3 * HS: [g_sent], H0 + 4 * HS: [g_sent2],
             H0 + 4 * HS + 12: [g_at11, g_sent_done], NTG - 13: [g_hpoll], NTG - 7: [g_hload]}
    wo_at = [n for n in range(5, NTG - 14) if n % 2 == 1]
    step_ = len(wo_at) / 16.0
    for k_ in range(16):
        hooks.setdefault(wo_at[int(k_ * step_)], []).append(wo_issue)
    if opt.get("saw", 1):
        gs = {1: (2, 2), 2: (4, 4), 3: (1, 2), 4: (3, 2)}[opt.get("saw", 1)]
        n_, g_ = 0, 0
        while n_ < NTG:
            hooks.setdefault(n_, []).append(lambda v_=3 - g_ % 4: a.e(f"s_setprio {v_}"))
            n_ += gs[g_ % 2]
            g_ += 1
    else:
        for k_, v_ in ((opt.get("g2", 36), 2), (opt.get("g1", 56), 1)):
            hooks.setdefault(k_, []).append(lambda v_=v_: a.e(f"s_setprio {v_}"))
    attn_main("G", hooks)
    a.e("s_setprio 3")
    a.e("s_mul_i32 s47, s44, 5120")
    a.e(f"s_add_u32 s47, s47, {CMB}")
    a.e("v_add_u32 v8, s47, v2")
    a.e("v_lshlrev_b32 v9, 3, v1")
    a.e("v_add_u32 v9, s47, v9")
    for j in range(2):
        a.ds(f"ds_write_b128 v8, {vr(O+16*j)} offset:{j*2560}", "w")
        a.ds(f"ds_write_b128 v8, {vr(O+16*j+4)} offset:{j*2560+1024}", "w")
        a.ds(f"ds_write_b64 v9, {vr(O+16*j+8,2)} offset:{j*2560+2048}", "w")
    a.e("s_lshl_b32 s47, s44, 2")
    a.e(f"s_add_u32 s47, s47, {CTR+16}")
    a.e("v_mov_b32 v14, s47")
    a.e("v_mov_b32 v15, 1")
    a.ds("ds_write_b32 v14, v15", "w")

    HK, HV = 128, 136
    MC, MP = 80, 96
    a.e("v_lshlrev_b32 v10, 2, v4")
    a.e("v_sub_u32 v10, v5, v10")
    a.e("v_add_u32 v10, 18, v10")
    a.e("v_mov_b32 v12, 0x5555")
    a.e("v_mov_b32 v13, 0")
    a.e("v_lshlrev_b64 v[12:13], v10, v[12:13]")
    a.e("v_not_b32 v12, v12")
    a.e("v_not_b32 v13, v13")
    a.e("s_cmp_eq_u32 s10, 0")
    a.e("s_cselect_b32 s47, -1, 0")
    a.e("v_or_b32 v12, s47, v12")
    a.e(f"s_mov_b32 s47, {NEGBIG:#x}")
    for r in range(16):
        cbit = (r & 3) + 8 * (r >> 2)
        a.e(f"v_bfe_i32 v{MC+r}, v13, {cbit}, 1")
        a.e(f"v_and_b32 v{MC+r}, s47, v{MC+r}")
    SCs, SPs = [144, 176], [160, 192]
    a.nop(2)
    for hh in range(2):
        a.e(f"v_mfma_f32_32x32x16_bf16 {vr(SCs[hh],16)}, {vr(PKB+8+4*hh)}, {vr(PKB+4*hh)}, {vr(MC,16)}")
    for r in range(8, 16):
        cbit = (r & 3) + 8 * (r >> 2)
        a.e(f"v_bfe_i32 v{MP+r}, v12, {cbit}, 1")
        a.e(f"v_and_b32 v{MP+r}, s47, v{MP+r}")
    ONES = 140
    for r in range(4):
        a.e(f"v_mov_b32 v{ONES+r}, 0x3f803f80")
    a.wait(vm=["hl", "gl"])
    for hh in range(2):
        a.e(f"v_mfma_f32_32x32x16_bf16 {vr(SPs[hh],16)}, {vr(HK+4*hh)}, {vr(PKB+4*hh)}, {vr(MP,16)}")
    poll_check(225, "s75", 228, "none", gate=True)
    a.e("v_lshlrev_b32 v228, 16, v228")
    a.e("s_lshl_b32 s80, s10, 6")
    a.e("s_lshl_b32 s47, s11, 1")
    a.e("s_add_u32 s80, s80, s47")
    a.e("s_add_u32 s80, s80, 32")
    a.e("s_lshl_b32 s80, s80, 10")
    a.e(f"s_add_u32 s80, s80, {OF:#x}")
    a.e("s_lshl_b32 s81, s10, 4")
    a.e("s_add_u32 s81, s81, s11")
    a.e(f"s_lshl_b32 s81, s81, {FSH}")
    a.e(f"s_add_u32 s81, s81, {F_OB:#x}")
    LP = [32, 112]
    LO = [48, 64]
    LS = [80, 96]
    a.wait(lg="w")
    for hh in range(2):
        vals = [SCs[hh] + r for r in range(16)] + [SPs[hh] + 8 + r for r in range(8)]
        a.e(f"v_max3_f32 v10, v{vals[0]}, v{vals[1]}, v{vals[2]}")
        for i in range(3, 23, 2):
            a.e(f"v_max3_f32 v10, v10, v{vals[i]}, v{vals[i+1]}")
        a.e(f"v_max_f32 v10, v10, v{vals[23]}")
        a.e("v_mov_b32 v11, v10")
        a.nop(2)
        a.e("v_permlane32_swap_b32 v10, v11")
        a.nop(2)
        a.e("v_max_f32 v10, v10, v11")
        for v in vals:
            a.e(f"v_sub_f32 v{v}, v{v}, v10")
        for v in vals:
            a.e(f"v_exp_f32 v{v}, v{v}")
        a.e("s_nop 0")
        for i in range(12):
            a.e(f"v_cvt_pk_bf16_f32 v{LP[hh]+i}, v{vals[2*i]}, v{vals[2*i+1]}")
        a.nop(2)
        for i, va in enumerate((PKB + 16, PKB + 20, HV)):
            cc = "0" if i == 0 else vr(LO[hh], 16)
            a.e(f"v_mfma_f32_32x32x16_bf16 {vr(LO[hh],16)}, {vr(va)}, {vr(LP[hh]+4*i)}, {cc}")
        for i in range(3):
            cc = "0" if i == 0 else vr(LS[hh], 16)
            a.e(f"v_mfma_f32_32x32x16_bf16 {vr(LS[hh],16)}, {vr(ONES)}, {vr(LP[hh]+4*i)}, {cc}")
    for hh in range(2):
        a.e(f"v_rcp_f32 v10, v{LS[hh]}")
        a.e("s_nop 0")
        a.e("v_mul_f32 v10, v10, v228")
        o = LO[hh] + 8 * hh
        for r in range(8):
            a.e(f"v_mul_f32 v{o+r}, v10, v{o+r}")
        for r in range(4):
            a.e(f"v_cvt_pk_bf16_f32 v{208+4*hh+r}, v{o+2*r}, v{o+2*r+1}")
        a.vmem(f"buffer_store_dwordx4 {vr(208+4*hh)}, v2, s[28:31], s80 offen offset:{hh*1024} sc1", "ob")
    wo_addr()
    a.wait(vm="ob")
    flag_store("s81", 12)
    pf.stamp(8)
    a.e("s_setprio 0")
    poll_inline(224, "s69", 244, sleep=4)
    ob_loads(a)
    a.e("s_waitcnt vmcnt(0)")
    pf.stamp(13)
    a.e("s_setprio 3")
    a.c("END gemm")

    a.e("PHASE3:")
    a.vm = []
    a.lg = []
    A3 = 48
    OBF, OAF = 152, 80
    W3 = [184]

    def wslot(t):
        return W3[0] + ((t % 4) if W3[0] == 184 else t) * 8

    def wreads(t, base):
        for j in range(2):
            for sec in range(2):
                a.ds(f"ds_read_b64_tr_b16 {vr(wslot(t)+j*4+sec*2,2)}, v{base+j} offset:{t*2048+sec*1024}", f"w{t}")

    def mm3(t, of, first):
        for j in range(2):
            cc = "0" if first else vr(A3 + 16 * j, 16)
            a.e(f"v_mfma_f32_32x32x16_bf16 {vr(A3+16*j,16)}, {vr(wslot(t)+j*4)}, {vr(of+4*t)}, {cc}")

    def oa_load(t, asm):
        return f"buffer_load_dwordx4 {vr(OAF+4*t)}, v2, s[28:31], s{67 if t < 4 else 70} offen offset:{(t&3)*1024} sc1"

    a.e("s_barrier")
    if opt.get("tailp"):
        pf.stamp(2)
    for t in range(3):
        wreads(t, 234)
    for t in range(8):
        a.wait(lg=f"w{t}")
        mm3(t, OBF, t == 0)
        if t + 3 < 8:
            wreads(t + 3, 234)
        if t == opt.get("oaat", 6):
            for u in range(8):
                a.vmem(oa_load(u, a), f"oa{u}")
    W3[0] = 128
    a.e("s_barrier")
    if opt.get("tailp"):
        pf.stamp(3)
    for t in range(8):
        if t >= 3:
            a.wait(lg=f"w{t-3}")
        wreads(t, 232)
    srd(a, 32, 18, 2048 * 512 * 2)
    for t in range(1, 4):
        a.e(f"s_xor_b32 s47, s63, {2*t}")
        a.e("s_mul_i32 s47, s47, 6144")
        a.e(f"s_add_u32 s47, s47, {RED + (t-1)*2048}")
        a.e(f"v_add_u32 v{8+t}, s47, v2")
    a.e("s_mul_i32 s47, s63, 6144")
    a.e(f"s_add_u32 s47, s47, {RED}")
    a.e("v_add_u32 v8, s47, v2")
    a.e("v_lshlrev_b32 v12, 10, v5")
    a.e("v_lshl_add_u32 v12, v4, 5, v12")
    a.wait(lg="w7")
    for t in range(8):
        o = OAF + 4 * t
        a.wait(vm=f"oa{t}")
        a.e(f"v_max3_u32 v13, v{o}, v{o+1}, v{o+2}")
        a.e(f"v_max_u32 v13, v13, v{o+3}")
        a.e("v_cmp_eq_u32 vcc, -1, v13")
        a.e(f"s_cbranch_vccnz OA{t}_S")
        a.e(f"OA{t}_D:")
        mm3(t, OAF, False)
        cold.e(f"OA{t}_S:")
        cold.e("s_mov_b32 s78, 0")
        cold.e(f"OA{t}:")
        for u in range(t, 8):
            cold.e(oa_load(u, cold))
        cold.e(f"s_waitcnt vmcnt({7-t})")
        cold.e(f"v_max3_u32 v13, v{o}, v{o+1}, v{o+2}")
        cold.e(f"v_max_u32 v13, v13, v{o+3}")
        cold.e("v_cmp_eq_u32 vcc, -1, v13")
        cold.e(f"s_cbranch_vccz OA{t}_D")
        spin_tail(f"OA{t}", f"OA{t}_D")
    if opt.get("tailp"):
        pf.stamp(4)
    a.nop(11)
    for t in (1, 2, 3):
        a.ds(f"ds_write_b128 v{8+t}, {vr(A3+8*t)}", "w")
        a.ds(f"ds_write_b128 v{8+t}, {vr(A3+8*t+4)} offset:1024", "w")
    a.wait(lg="w")
    a.e("s_barrier")
    if opt.get("tailp"):
        pf.stamp(5)
    for t in range(3):
        a.ds(f"ds_read_b128 {vr(192+8*t)}, v8 offset:{t*2048}", f"r{t}")
        a.ds(f"ds_read_b128 {vr(196+8*t)}, v8 offset:{t*2048+1024}", f"r{t}")
    for t in range(3):
        a.wait(lg=f"r{t}")
        for r in range(8):
            a.e(f"v_add_f32 v{A3+r}, v{A3+r}, v{192+8*t+r}")
    for r in range(4):
        a.e(f"v_cvt_pk_bf16_f32 v{112+r}, v{A3+2*r}, v{A3+2*r+1}")
    a.e(f"buffer_store_dwordx4 v[112:115], v12, s[32:35], s72 offen{' sc1' if opt.get('outsc1', 0) else ''}")
    pf.finish()
    a.e("K_END:")
    a.e("s_endpgm")
    a.c("BEGIN slow")
    a.lines += cold.lines
    a.c("END slow")
    a.e("K_LAST:")
    a.e("s_endpgm")
    return a


def build(opt=None):
    opt = opt or {}
    ref = open(os.path.join(os.path.dirname(__file__), "..", "cdna_kernels", NAME + ".s.ref")).read()
    head = [l for l in ref.splitlines() if l.startswith(";") and "@launch" not in l]
    out = "\n".join(head) + "\n"
    out += "; @launch grid=(256,1,1) block=(512,1,1) lds=163840\n"
    out += '.amdgcn_target "amdgcn-amd-amdhsa--gfx950"\n'
    a = gen(opt)
    probs = a.check("k", {"L": {"gemm", "slow"}, "G": {"loader", "slow"}})
    for p in probs:
        print("HAZARD", p)
    out += header(NAME + "_kernel") + a.text()
    out += descriptor(NAME + "_kernel", 256, 102)
    return out, not probs


if __name__ == "__main__":
    opt = {}
    dst = os.path.join(os.path.dirname(__file__), "..", "cdna_kernels", NAME + ".s")
    for arg in sys.argv[1:]:
        if "=" in arg:
            k, v = arg.split("=")
            opt[k] = int(v)
        else:
            dst = arg
    txt, ok = build(opt)
    open(dst, "w").write(txt)
    print("wrote", dst, len(txt), "bytes", "hazards OK" if ok else "HAZARDS FOUND")
```

```python
import math
import struct
import sys
import os
sys.path.insert(0, os.path.dirname(__file__))
from asmlib import Asm, descriptor, header

NAME = "gated_mix__mha_block__sliding_local_dilated__prompt"

KVA = 0x000000
HALO = 0x600000
OF = 0xC00000
FL = 0x1000000
GT = FL + 0xC000
F_A, F_H, F_OB = FL + 0x20000, FL + 0x40000, FL + 0x60000
FSH = 7
PROF = 0x1800000
WS_BYTES = 268435456
SPIN = 1 << 16

SLOT = 24576
WQ = 98304
WBR = [73728, 0, 24576, 98304, 122880]
CTR = 65536
QX = 57344
WOA, WOB = 0, 98304
CMB = 77824
RED = 98304
WROW = 64 * 3072


def f32bits(x):
    return struct.unpack("<I", struct.pack("<f", x))[0]


QSCALE = f32bits(0.25 * math.log2(math.e))
NEGBIG = f32bits(-1.0e30)


def vr(b, n=4):
    return f"v[{b}:{b+n-1}]"


def srd(a, d, base, nbytes):
    a.e(f"s_mov_b32 s{d}, s{base}")
    a.e(f"s_mov_b32 s{d+1}, s{base+1}")
    a.e(f"s_mov_b32 s{d+2}, {nbytes:#x}")
    a.e(f"s_mov_b32 s{d+3}, 0x20000")


class Prof:
    def __init__(self, a, on):
        self.a, self.on = a, on

    def stamp(self, i, rt=False):
        if not self.on:
            return
        a = self.a
        rt = rt or self.on >= 2
        a.e(f"s_mem{'real' if rt else ''}time s[98:99]")
        a.e("s_waitcnt lgkmcnt(0)")
        if i < 2:
            a.e(f"s_mov_b32 s{100+i}, s98")
        else:
            a.e(f"v_writelane_b32 v0, s98, {i}")
        a.lg = []

    def finish(self):
        if not self.on:
            return
        a = self.a
        a.e("s_waitcnt vmcnt(0)")
        self.stamp(14)
        self.stamp(15, True)
        a.e("v_writelane_b32 v0, s100, 0")
        a.e("v_writelane_b32 v0, s101, 1")
        a.e("s_mov_b64 exec, 0xffff")
        a.e("v_lshlrev_b32 v24, 2, v1")
        a.e("s_lshl_b32 s98, s2, 3")
        a.e("s_add_u32 s98, s98, s63")
        a.e("s_lshl_b32 s98, s98, 6")
        a.e(f"s_add_u32 s98, s98, {PROF:#x}")
        a.e("buffer_store_dword v0, v24, s[28:31], s98 offen")


def gen(opt):
    a = Asm()
    pf = Prof(a, opt.get("prof"))
    uid = [0]
    SLP = opt.get("sleep", 2)

    cold = Asm()

    def spin_tail(L, D):
        cold.e("s_add_u32 s78, s78, 1")
        cold.e(f"s_cmp_lt_u32 s78, {SPIN}")
        cold.e(f"s_cbranch_scc1 {L}")
        cold.e(f"s_branch {D}")

    def poll_issue(vaddr, soff, tmp, tag):
        a.vmem(f"buffer_load_dwordx2 {vr(tmp,2)}, v{vaddr}, s[28:31], {soff} offen sc1", tag)

    def poll_check(vaddr, soff, tmp, tag, gate=False):
        uid[0] += 1
        L, D = f"POLL{uid[0]}", f"POLLD{uid[0]}"
        cmp = f"v_cmp_ne_u32 vcc, s76, v{tmp+1}" if gate else f"v_cmp_ne_u64 vcc, s[76:77], {vr(tmp,2)}"
        a.wait(vm=tag)
        a.e(cmp)
        a.e(f"s_cbranch_vccnz {L}_S")
        a.e(f"{D}:")
        cold.e(f"{L}_S:")
        cold.e("s_mov_b32 s78, 0")
        cold.e(f"{L}:")
        cold.e(f"buffer_load_dwordx2 {vr(tmp,2)}, v{vaddr}, s[28:31], {soff} offen sc1")
        cold.e("s_waitcnt vmcnt(0)")
        cold.e(cmp)
        cold.e(f"s_cbranch_vccz {D}")
        cold.e(f"s_sleep {SLP}")
        spin_tail(L, D)

    def poll_inline(vaddr, soff, tmp, sleep=0):
        uid[0] += 1
        L, D = f"POLL{uid[0]}", f"POLLD{uid[0]}"
        a.e("s_mov_b32 s78, 0")
        a.e(f"{L}:")
        if sleep:
            a.e(f"s_sleep {sleep}")
        a.e(f"buffer_load_dwordx2 {vr(tmp,2)}, v{vaddr}, s[28:31], {soff} offen sc1")
        a.e("s_add_u32 s78, s78, 1")
        a.e(f"s_cmp_lt_u32 s78, {SPIN}")
        a.e("s_cselect_b64 s[96:97], -1, 0")
        a.e("s_waitcnt vmcnt(0)")
        a.e(f"v_cmp_ne_u64 vcc, s[76:77], {vr(tmp,2)}")
        a.e("s_nop 0")
        a.e("s_and_b64 s[96:97], vcc, s[96:97]")
        a.e(f"s_cbranch_scc1 {L}")
        a.vm = []

    def tag_issue(tmp, vz):
        a.vmem(f"buffer_load_dwordx2 {vr(tmp,2)}, v{vz}, s[32:35], 0 offen sc1", "tag")

    def tag_check(tmp, vz):
        uid[0] += 1
        L, D = f"TAG{uid[0]}", f"TAGD{uid[0]}"
        a.wait(vm="tag")
        a.e(f"v_readfirstlane_b32 s76, v{tmp}")
        a.e(f"v_readfirstlane_b32 s77, v{tmp+1}")
        a.e("s_nop 1")
        a.e("s_cmp_eq_u32 s76, 0")
        a.e(f"s_cbranch_scc1 {L}_S")
        a.e(f"{D}:")
        cold.e(f"{L}_S:")
        cold.e("s_mov_b32 s78, 0")
        cold.e(f"{L}:")
        cold.e(f"s_sleep {SLP}")
        cold.e(f"buffer_load_dwordx2 {vr(tmp,2)}, v{vz}, s[32:35], 0 offen sc1")
        cold.e("s_waitcnt vmcnt(0)")
        cold.e(f"v_readfirstlane_b32 s76, v{tmp}")
        cold.e(f"v_readfirstlane_b32 s77, v{tmp+1}")
        cold.e("s_nop 1")
        cold.e("s_cmp_lg_u32 s76, 0")
        cold.e(f"s_cbranch_scc1 {D}")
        spin_tail(L, D)

    def flag_store(soff, t):
        a.e(f"v_mov_b32 v{t}, s76")
        a.e(f"v_mov_b32 v{t+1}, s77")
        a.e(f"v_mov_b32 v{t+2}, 0")
        a.e("s_mov_b64 exec, 1")
        a.vmem(f"buffer_store_dwordx2 {vr(t,2)}, v{t+2}, s[28:31], {soff} offen sc1", "fl")
        a.e("s_mov_b64 exec, -1")

    Q, C, O = 8, 16, 48
    SB = [80, 96, 112]
    KV, NBP = 128, 4
    NQ = 2
    NKG = opt.get("nkg", 32)
    NKT = {"G": NKG, "L": 64 - NKG}
    PKB = 232
    NF = opt.get("nf", 1)

    def ones_init(b, src):
        return [f"v_mov_b32 v{KV+b*12+4+r}, v{src}" for r in range(8)]

    def wo_addr():
        a.e("v_bfe_u32 v232, v1, 2, 2")
        a.e("v_lshl_add_u32 v233, v4, 2, v232")
        a.e("v_lshlrev_b32 v233, 7, v233")
        a.e("v_and_b32 v234, 1, v1")
        a.e("v_lshlrev_b32 v234, 2, v234")
        a.e("v_bfe_u32 v235, v1, 1, 1")
        a.e("v_add_u32 v234, v234, v235")
        a.e("v_bfe_u32 v235, v1, 4, 1")
        a.e("v_lshl_add_u32 v234, v235, 1, v234")
        a.e("s_and_b32 s47, s65, 1")
        a.e("s_lshl_b32 s47, s47, 1")
        a.e("v_xor_b32 v234, s47, v234")
        a.e("v_and_b32 v235, 1, v234")
        a.e("v_lshl_add_u32 v233, v235, 3, v233")
        a.e("v_lshrrev_b32 v234, 1, v234")
        a.e("v_bfe_u32 v235, v1, 3, 1")
        a.e("s_lshr_b32 s47, s65, 1")
        a.e("v_xor_b32 v235, s47, v235")
        a.e("v_lshl_add_u32 v234, v235, 2, v234")
        a.e("v_lshl_add_u32 v233, v234, 4, v233")
        a.e("s_lshl_b32 s47, s65, 14")
        a.e("v_add_u32 v232, s47, v233")
        a.e("v_xor_b32 v233, 64, v232")
        a.e(f"v_add_u32 v234, {WOB}, v232")
        a.e(f"v_add_u32 v235, {WOB}, v233")
        a.e("v_and_b32 v224, 3, v1")
        a.e(f"v_lshlrev_b32 v224, {FSH}, v224")

    def attn_vsetup(role):
        a.e("v_cmp_gt_u32 vcc, 32, v1")
        a.e("v_mov_b32 v92, 0x3f80")
        a.e("v_mov_b32 v227, v30")
        a.e("v_cndmask_b32 v80, 0, v92, vcc")
        for r in (81, 82, 83, 85, 86, 87, 89, 90, 91):
            a.e(f"v_mov_b32 v{r}, 0")
        a.e("v_lshlrev_b32 v225, 3, v5")
        a.e("v_lshrrev_b32 v226, 3, v1")
        a.e("v_lshlrev_b32 v226, 10, v226")
        a.e("v_bfe_u32 v92, v1, 4, 1")
        a.e("v_lshlrev_b32 v92, 2, v92")
        a.e("v_and_b32 v93, 7, v1")
        a.e("v_xor_b32 v92, v92, v93")
        a.e("v_lshl_add_u32 v226, v92, 4, v226")
        if role == "G":
            a.e(f"v_mov_b32 v224, {CTR}")
        else:
            wo_addr()
            a.e("s_mul_i32 s47, s44, 5120")
            a.e(f"s_add_u32 s47, s47, {CMB}")
            a.e("v_add_u32 v240, s47, v2")
            a.e("v_lshlrev_b32 v241, 3, v1")
            a.e("v_add_u32 v241, s47, v241")
            a.e("s_lshl_b32 s47, s44, 2")
            a.e(f"s_add_u32 s47, s47, {CTR+16}")
            a.e("v_mov_b32 v242, s47")
            a.e(f"v_mov_b32 v246, {CTR}")
            a.e("v_mov_b32 v247, 1")

    def wo_issue():
        a.e("s_add_u32 m0, s58, s56")
        a.e("s_lshl_b32 s57, s56, 3")
        a.e("s_add_u32 s57, s57, s59")
        a.vmem("buffer_load_dwordx4 v226, s[20:23], s57 offen lds", "wo")
        a.e("s_add_u32 s56, s56, 1024")

    def wo_touch(half, dst):
        a.e("s_lshr_b32 s57, s2, 3")
        a.e("s_lshl_b32 s57, s57, 2")
        a.e("s_add_u32 s57, s57, s44")
        a.e("s_lshl_b32 s57, s57, 12")
        a.e(f"v_lshlrev_b32 v{dst}, 3, v3")
        if half is not None:
            a.e(f"v_and_b32 v{dst}, 0x7ff, v{dst}")
        a.vmem(f"buffer_load_dword v{dst}, v{dst}, s[20:23], s57 offen offset:{(half or 0)*2048}", "wt")

    def kb(kt):
        return KV + (kt % (2 * NBP)) * 12

    def load_pair(p, asm=None):
        t_ = asm or a
        for t in range(2):
            t_.vmem(f"buffer_load_dwordx4 {vr(kb(2*p+t))}, v6, s[28:31], s54 offen offset:{t*2048} sc1", f"k{2*p+t}")
        t_.e("s_mov_b64 exec, s[60:61]")
        for t in range(2):
            for m in range(2):
                t_.vmem(f"buffer_load_dwordx4 {vr(kb(2*p+t)+4+4*m)}, v3, s[28:31], s54 offen offset:{t*2048+1024+m*512} sc1", f"v{2*p+t}")
        t_.e("s_mov_b64 exec, -1")
        t_.e("s_add_u32 s54, s54, 4096")

    def first_loads():
        a.e("s_mov_b32 s54, s52")
        for p in range(NF):
            load_pair(p)

    def lds_check(vaddr, tmp, target, tag):
        uid[0] += 1
        L, D = f"LC{uid[0]}", f"LCD{uid[0]}"
        a.wait(lg=tag)
        a.e(f"v_cmp_gt_u32 vcc, {target}, v{tmp}")
        a.e(f"s_cbranch_vccnz {L}_S")
        a.e(f"{D}:")
        cold.e(f"{L}_S:")
        cold.e("s_mov_b32 s78, 0")
        cold.e(f"{L}:")
        cold.e(f"s_sleep {SLP}")
        cold.e(f"ds_read_b32 v{tmp}, v{vaddr}")
        cold.e("s_waitcnt lgkmcnt(0)")
        cold.e(f"v_cmp_gt_u32 vcc, {target}, v{tmp}")
        cold.e(f"s_cbranch_vccz {D}")
        cold.e("s_add_u32 s78, s78, 1")
        cold.e(f"s_cmp_lt_u32 s78, {SPIN*16}")
        cold.e(f"s_cbranch_scc1 {L}")
        cold.e(f"s_branch {D}")

    def attn_main(R, hooks):
        nkt = NKT[R]
        a.wait(vm="k0", lg="q")
        for j in range(NQ):
            a.e(f"v_mfma_f32_32x32x16_bf16 {vr(O+16*j,16)}, {vr(kb(0))}, {vr(Q+4*j)}, 0")
        for p in range(NF, NBP - 1):
            load_pair(p)
        if NF == NBP - 1:
            a.nop(11)
        elif NF == NBP - 2:
            a.nop(2)
        for j in range(NQ):
            o = O + 16 * j
            t = 92 + j
            a.e(f"v_max3_f32 v{t}, v{o}, v{o+1}, v{o+2}")
            for r in range(3, 15, 2):
                a.e(f"v_max3_f32 v{t}, v{t}, v{o+r}, v{o+r+1}")
            a.e(f"v_max_f32 v{t}, v{t}, v{o+15}")
            a.e(f"v_add_f32 v{t}, {f32bits(40.0):#x}, v{t}")
            bb = 84 + 4 * j
            a.e(f"v_cvt_pk_bf16_f32 v{bb}, -v{t}, 0")
            a.nop(2)
            a.e(f"v_mfma_f32_32x32x16_bf16 {vr(C+16*j,16)}, v[80:83], {vr(bb)}, 0")
        a.e(f"A_MAIN_{R}:")
        for r in range(32):
            a.e(f"v_mov_b32 v{O+r}, 0")
        tiles = [(kt, j) for kt in range(nkt) for j in range(NQ)]

        def qk(n):
            kt, j = tiles[n]
            return f"v_mfma_f32_32x32x16_bf16 {vr(SB[n%3],16)}, {vr(kb(kt))}, {vr(Q+4*j)}, {vr(C+16*j,16)}"

        def pv(n, m):
            kt, j = tiles[n]
            return f"v_smfmac_f32_32x32x32_bf16 {vr(O+16*j,16)}, {vr(kb(kt)+4+4*m)}, {vr(SB[n%3]+8*m,8)}, v7"

        pf.stamp(10)
        a.e(qk(0))
        a.e(qk(1))
        a.nop(11)
        NT = len(tiles)
        P1, P2, P3 = opt.get("p1", 3), opt.get("p2", 8), opt.get("p3", 13)
        for n in range(NT):
            kt, j = tiles[n]
            s = SB[n % 3]
            if n == 32:
                pf.stamp(11)
            if R == "L" and n in (8, 16, 48):
                pf.stamp({8: 6, 16: 7, 48: 8}[n])
            for i in range(16):
                if i == P1 and n > 0:
                    a.e(pv(n - 1, 1))
                if i == P2 and n + 2 < NT:
                    if tiles[n + 2][1] == 0:
                        kt2 = tiles[n + 2][0]
                        a.wait(vm=f"v{kt2+1}" if (kt2 % 2 == 0 and opt.get("onewait", 0) and n >= 2) else f"k{kt2}")
                    a.e(qk(n + 2))
                if i == P3:
                    if j == 0:
                        a.wait(vm=f"v{kt}")
                    a.e(pv(n, 0))
                if opt.get("spread", 0) and n // 4 + NBP - 1 < nkt // 2:
                    p_ = n // 4 + NBP - 1
                    if i == 6 and n % 4 == 0:
                        for t in range(2):
                            a.vmem(f"buffer_load_dwordx4 {vr(kb(2*p_+t))}, v6, s[28:31], s54 offen offset:{t*2048} sc1", f"k{2*p_+t}")
                    if i == 10 and n % 4 == 0:
                        a.e("s_mov_b64 exec, s[60:61]")
                        for t in range(2):
                            for m in range(2):
                                a.vmem(f"buffer_load_dwordx4 {vr(kb(2*p_+t)+4+4*m)}, v3, s[28:31], s54 offen offset:{t*2048+1024+m*512} sc1", f"v{2*p_+t}")
                        a.e("s_mov_b64 exec, -1")
                        a.e("s_add_u32 s54, s54, 4096")
                if i == 6:
                    if n % 4 == 0 and n // 4 + NBP - 1 < nkt // 2 and not opt.get("spread", 0):
                        load_pair(n // 4 + NBP - 1)
                    for h_ in hooks.get(n, []):
                        h_()
                a.e(f"v_exp_f32 v{s+i}, v{s+i}")
        T0 = SB[(NT + 1) % 3]
        a.e(f"v_mov_b32 v{T0}, {f32bits(2.0**100):#x}")
        a.e(f"v_mov_b32 v{T0+1}, 0")
        a.e(pv(NT - 1, 1))
        a.e(f"v_mov_b32 v{T0+2}, {f32bits(2.0**-70):#x}")
        for r in range(8):
            a.e(f"v_fma_f32 v{T0+1}, v{O+r}, 0, v{T0+1}")
        a.e(f"v_cmp_lt_f32 s[96:97], v{O+8}, v{T0}")
        a.e(f"v_cmp_gt_f32 vcc, v{O+8}, v{T0+2}")
        a.e(f"v_mov_b32 v{O+9}, v{C}")
        a.e("s_and_b64 s[96:97], s[96:97], vcc")
        pf.stamp(12)
        for r in range(8):
            a.e(f"v_fma_f32 v{T0+1}, v{O+16+r}, 0, v{T0+1}")
        a.e(f"v_cmp_lt_f32 s[50:51], v{O+24}, v{T0}")
        a.e(f"v_cmp_gt_f32 vcc, v{O+24}, v{T0+2}")
        a.e(f"v_mov_b32 v{O+25}, v{C+16}")
        a.e("s_and_b64 s[50:51], s[50:51], vcc")
        a.e(f"v_cmp_o_f32 vcc, v{T0+1}, v{T0+1}")
        a.e("s_and_b64 s[96:97], s[96:97], s[50:51]")
        a.e("s_and_b64 s[96:97], s[96:97], vcc")
        a.e("s_or_b64 s[96:97], s[96:97], s[94:95]")
        a.e("s_cmp_eq_u64 s[96:97], -1")
        a.e(f"s_cbranch_scc0 A_FBS_{R}")
        c_ = cold
        c_.e(f"A_FBS_{R}:")
        c_.e("s_waitcnt vmcnt(0) lgkmcnt(0)")
        c_.e(f"v_mov_b32 v80, {NEGBIG:#x}")
        c_.e(f"v_mov_b32 v81, {NEGBIG:#x}")
        c_.e("s_mov_b32 s54, s52")
        c_.e("s_mov_b32 s50, 0")
        c_.e(f"A_FB_{R}:")
        c_.e(f"buffer_load_dwordx4 {vr(kb(0))}, v6, s[28:31], s54 offen sc1")
        c_.e("s_waitcnt vmcnt(0)")
        for j in range(NQ):
            c_.e(f"v_mfma_f32_32x32x16_bf16 {vr(O+16*j,16)}, {vr(kb(0))}, {vr(Q+4*j)}, 0")
        c_.nop(12)
        for j in range(NQ):
            o = O + 16 * j
            for r in range(0, 16, 2):
                c_.e(f"v_max3_f32 v{80+j}, v{80+j}, v{o+r}, v{o+r+1}")
        c_.e("s_add_u32 s54, s54, 2048")
        c_.e("s_add_u32 s50, s50, 1")
        c_.e(f"s_cmp_lt_u32 s50, {nkt}")
        c_.e(f"s_cbranch_scc1 A_FB_{R}")
        for j in range(NQ):
            c_.e(f"v_mov_b32 v82, v{80+j}")
            c_.nop(2)
            c_.e(f"v_permlane32_swap_b32 v82, v{80+j}")
            c_.nop(2)
            c_.e(f"v_max_f32 v82, v82, v{80+j}")
            for r in range(16):
                c_.e(f"v_sub_f32 v{C+16*j+r}, 0, v82")
        for b in range(2 * NBP):
            for t in ones_init(b, 227):
                c_.e(t)
        c_.e("s_mov_b64 s[94:95], -1")
        c_.e("s_mov_b32 s54, s52")
        c_.e("s_mov_b32 s56, 0")
        c_.e("s_mov_b32 s26, 0")
        for p in range(NBP - 1):
            load_pair(p, c_)
        c_.e("s_waitcnt vmcnt(0)")
        c_.e(f"s_branch A_MAIN_{R}")

    a.e("s_cmp_ge_u32 s2, 256")
    a.e("s_cbranch_scc1 K_END")
    pf.stamp(0, True)
    pf.stamp(1)
    a.e("s_load_dwordx4 s[4:7], s[0:1], 0")
    a.e("s_load_dwordx4 s[36:39], s[0:1], 64")
    a.e("s_load_dwordx4 s[12:15], s[0:1], 32")
    a.e("s_load_dwordx4 s[16:19], s[0:1], 48")
    a.e("s_load_dwordx2 s[8:9], s[0:1], 16")
    a.e("s_memrealtime s[76:77]")
    a.e("s_and_b32 s47, s2, 7")
    a.e("s_lshr_b32 s48, s2, 3")
    a.e("s_and_b32 s40, s47, 3")
    a.e("s_lshl_b32 s40, s40, 3")
    a.e("s_and_b32 s80, s48, 7")
    a.e("s_add_u32 s40, s40, s80")
    a.e("s_lshr_b32 s41, s47, 2")
    a.e("s_lshl_b32 s41, s41, 2")
    a.e("s_lshr_b32 s81, s48, 3")
    a.e("s_add_u32 s41, s41, s81")
    a.e("s_lshr_b32 s42, s48, 2")
    a.e("s_lshl_b32 s43, s47, 2")
    a.e("s_and_b32 s51, s48, 3")
    a.e("s_add_u32 s43, s43, s51")
    a.e("v_lshrrev_b32 v2, 6, v0")
    a.e("v_and_b32 v1, 63, v0")
    a.e("v_readfirstlane_b32 s63, v2")
    a.e("v_lshlrev_b32 v2, 4, v1")
    a.e("v_lshrrev_b32 v4, 5, v1")
    a.e("v_and_b32 v5, 31, v1")
    a.e("v_mov_b32 v31, 0")
    a.e("s_and_b32 s44, s63, 3")
    a.e("s_cmp_lt_u32 s63, 4")
    a.e("s_cbranch_scc1 GEMM")

    def attn_ssetup(role):
        a.e("v_and_b32 v3, 15, v1")
        a.e("v_lshlrev_b32 v3, 4, v3")
        a.e("v_lshl_add_u32 v3, v4, 8, v3")
        a.e("v_and_b32 v6, 0x33, v1")
        a.e("v_bfe_u32 v7, v1, 2, 1")
        a.e("v_lshl_add_u32 v6, v7, 3, v6")
        a.e("v_bfe_u32 v7, v1, 3, 1")
        a.e("v_lshl_add_u32 v6, v7, 2, v6")
        a.e("v_lshlrev_b32 v6, 4, v6")
        k0 = 0 if role == "G" else NKG
        a.e("s_lshl_b32 s45, s40, 1")
        a.e("s_lshl_b32 s62, s41, 2")
        a.e("s_add_u32 s62, s62, s44")
        a.e(f"v_min_u32 v17, {NKT[role]-1}, v1")
        a.e(f"v_lshlrev_b32 v17, {FSH}, v17")
        a.e("s_lshr_b32 s48, s62, 1")
        a.e(f"s_lshl_b32 s48, s48, {6+FSH}")
        a.e(f"s_add_u32 s48, s48, {F_A + (k0 << FSH):#x}")
        a.e("s_lshl_b32 s52, s62, 17")
        a.e(f"s_add_u32 s52, s52, {KVA + k0*2048:#x}")
        a.e("s_lshl_b32 s49, s44, 11")
        a.e(f"s_add_u32 s49, s49, {QX}")
        a.e("s_mov_b32 s60, 0x0000ffff")
        a.e("s_mov_b32 s61, 0x0000ffff")
        a.e("v_and_b32 v30, 27, v1")
        a.e("v_cmp_eq_u32 vcc, 16, v30")
        a.e("v_mov_b32 v7, 0x3f803f80")
        a.e("s_lshl_b32 s58, s44, 14")
        a.e("v_cndmask_b32 v30, 0, v7, vcc")
        a.e("v_mov_b32 v7, 0xdddddddd")
        a.e(f"s_add_u32 s58, s58, {WOB if role == 'L' else WOA}")
        a.e("s_lshl_b32 s59, s44, 17")
        a.e("s_lshl_b32 s51, s42, 7")
        a.e("s_add_u32 s59, s59, s51")
        a.e("s_mov_b32 s56, 0")
        a.e("s_and_b32 s64, s63, 1")
        a.e("s_lshr_b32 s65, s63, 1")
        a.e("s_lshl_b32 s66, s43, 1")
        a.e("s_add_u32 s66, s66, s64")
        a.e("s_lshl_b32 s74, s45, 8")
        a.e(f"s_add_u32 s74, s74, {GT:#x}")
        a.e("s_lshl_b32 s67, s66, 6")
        a.e("s_lshl_b32 s68, s65, 3")
        a.e("s_add_u32 s67, s67, s68")
        a.e("s_lshl_b32 s67, s67, 10")
        a.e(f"s_add_u32 s67, s67, {OF:#x}")
        a.e("s_add_u32 s70, s67, 4096")
        a.e("s_add_u32 s68, s67, 0x8000")
        a.e("s_add_u32 s71, s68, 4096")
        a.e("s_lshl_b32 s69, s66, 4")
        a.e("s_lshl_b32 s47, s65, 2")
        a.e("s_add_u32 s69, s69, s47")
        a.e(f"s_lshl_b32 s69, s69, {FSH}")
        a.e(f"s_add_u32 s69, s69, {F_OB:#x}")
        a.e("s_lshl_b32 s73, s45, 6")
        a.e("s_add_u32 s73, s73, s62")
        a.e("s_lshl_b32 s73, s73, 10")
        a.e(f"s_add_u32 s73, s73, {OF:#x}")
        a.e("s_add_u32 s53, s73, 0x10000")
        a.e("s_lshl_b32 s72, s66, 15")
        a.e("s_add_u32 s72, s72, s51")
        a.e("s_lshr_b32 s47, s65, 1")
        a.e("s_lshl_b32 s47, s47, 6")
        a.e("s_add_u32 s72, s72, s47")
        a.e("s_and_b32 s47, s65, 1")
        a.e("s_lshl_b32 s47, s47, 4")
        a.e("s_add_u32 s72, s72, s47")

    def dma_addr(xv, wv):
        a.e("v_lshrrev_b32 v19, 3, v1")
        a.e("v_and_b32 v15, 7, v1")
        a.e("v_lshrrev_b32 v16, 4, v1")
        a.e("s_lshl_b32 s50, s44, 4")
        if xv is not None:
            a.e("s_lshl_b32 s49, s40, 6")
            a.e("s_add_u32 s49, s49, s50")
            a.e("v_add_u32 v12, s49, v19")
            a.e("v_lshlrev_b32 v12, 10, v12")
            a.e("v_xor_b32 v13, v15, v16")
            a.e("v_xor_b32 v14, 4, v13")
            a.e(f"v_lshl_add_u32 v{xv}, v13, 4, v12")
            a.e(f"v_lshl_add_u32 v{xv+1}, v14, 4, v12")
            a.e(f"v_add_u32 v{xv+1}, 0x2000, v{xv+1}")
        a.e("v_add_u32 v12, s50, v19")
        a.e("v_mul_u32_u24 v12, 0xc00, v12")
        a.e("v_and_b32 v13, 1, v16")
        a.e("v_lshlrev_b32 v13, 2, v13")
        a.e("v_xor_b32 v13, v15, v13")
        a.e(f"v_lshl_add_u32 v{wv}, v13, 4, v12")
        a.e("s_lshl_b32 s50, s41, 7")
        a.e(f"v_add_u32 v{wv}, s50, v{wv}")
        a.e(f"v_add_u32 v{wv+1}, 0x6000, v{wv}")

    def w_items(base, segs, wv, sd, so, m0b):
        L = []
        for k, seg in enumerate(segs):
            for i in range(2):
                L.append((f"s_add_u32 m0, s{m0b}, {base + k*8192 + i*1024 - seg*1024:#x}",
                          f"buffer_load_dwordx4 v{wv+i}, s[{sd}:{sd+3}], s{so} offen offset:{seg*1024} lds"))
        return L

    def w_adv(so):
        a.e(f"s_add_u32 s{so}, s{so}, {WROW:#x}")
        a.e(f"s_cmp_eq_u32 s{so}, {8*WROW:#x}")
        a.e(f"s_cselect_b32 s{so}, 0, s{so}")

    def rot_chunk(dst):
        a.e("s_lshl_b32 s81, s81, 1")
        a.e(f"s_add_u32 s{dst}, s80, s81")
        a.e(f"s_and_b32 s{dst}, s{dst}, {opt.get('rotmask', 7)}")

    def q_read():
        a.e("v_add_u32 v18, s49, v2")
        for j in range(NQ):
            a.ds(f"ds_read_b128 {vr(Q+4*j)}, v18 offset:{j*1024}", "q")

    def sb_arrive(vc, v1_, off=0):
        a.e("s_mov_b64 exec, 1")
        a.ds(f"ds_add_u32 v{vc}, v{v1_} offset:{off}", "sb")
        a.e("s_mov_b64 exec, -1")

    a.c("BEGIN loader")
    rot_chunk(82)
    dma_addr(8, 10)
    a.e("s_lshl_b32 s83, s44, 11")
    a.e("s_lshl_b32 s80, s82, 7")
    a.e(f"s_mul_i32 s81, s82, {WROW:#x}")
    a.e("s_mov_b32 s82, s81")
    a.e("s_mov_b32 s11, s81")
    a.e("s_waitcnt lgkmcnt(0)")
    srd(a, 20, 4, 2048 * 512 * 2)
    srd(a, 24, 6, 512 * 1536 * 2)

    def emit_items(items, tag):
        for m, l in items:
            a.e(m)
            a.e("s_nop 0")
            a.vmem(l, tag)

    def issue_a(c):
        base = (c % 3) * SLOT
        for i in range(2):
            a.e(f"s_add_u32 m0, s83, {base + i*1024:#x}")
            a.e("s_nop 0")
            a.vmem(f"buffer_load_dwordx4 v{8+i}, s[20:23], s80 offen lds", f"a{c}")
        a.e("s_add_u32 s80, s80, 128")
        a.e("s_and_b32 s80, s80, 0x3ff")
        emit_items(w_items(base + 8192, (1, 2), 10, 24, 81, 83), f"a{c}")
        w_adv(81)

    def issue_wb(c, wv=10):
        emit_items(w_items(WBR[c % 5], (0, 1, 2), wv, 84, 11, 83), f"b{c}")
        w_adv(11)

    def issue_q(c):
        emit_items(w_items(WQ + c * 8192, (0,), 10, 24, 82, 83), "wq")
        w_adv(82)

    issue_a(0)
    srd(a, 28, 38, WS_BYTES)
    srd(a, 32, 36, 256)
    srd(a, 84, 12, 512 * 1536 * 2)
    srd(a, 88, 16, 1024)
    a.e("s_lshl_b32 s47, s2, 3")
    a.e("s_add_u32 s47, s47, s63")
    a.e("s_cmp_eq_u32 s47, 4")
    a.e("s_cbranch_scc1 TAGPUB")
    a.e("TAGPUBD:")
    cold.e("TAGPUB:")
    cold.e("s_or_b32 s76, s76, 1")
    cold.e("v_mov_b32 v28, s76")
    cold.e("v_mov_b32 v29, s77")
    cold.e("s_mov_b64 exec, 1")
    cold.e("buffer_store_dwordx2 v[28:29], v31, s[32:35], 0 offen sc1")
    cold.e("s_mov_b64 exec, -1")
    cold.e("s_branch TAGPUBD")
    issue_a(1)
    Q0AT = opt.get("q0at", -1)
    if Q0AT == -1:
        issue_q(0)
    WB0AT = opt.get("wb0at", 0)
    if WB0AT == -1:
        issue_wb(0)
    a.e("s_lshl_b32 s92, s40, 6")
    a.e("s_lshl_b32 s47, s41, 3")
    a.e("s_add_u32 s92, s92, s47")
    a.e("s_lshl_b32 s47, s44, 1")
    a.e("s_add_u32 s92, s92, s47")
    a.e("s_lshl_b32 s10, s92, 3")
    a.e(f"s_add_u32 s10, s10, {GT:#x}")
    a.e("s_lshl_b32 s92, s92, 10")
    a.vmem("buffer_load_dwordx4 v[40:43], v2, s[88:91], 0 offen", "g")
    attn_ssetup("L")
    attn_vsetup("L")
    for b in range(2 * NBP):
        for t in ones_init(b, 30):
            a.e(t)

    def gate_compute():
        A = a.e
        for d in range(4):
            A(f"v_lshlrev_b32 v{44+2*d}, 16, v{40+d}")
            A(f"v_and_b32 v{45+2*d}, 0xffff0000, v{40+d}")
        for row in range(2):
            xb = 32 + row * 4
            acc = 56 + row
            for d in range(4):
                A(f"v_lshlrev_b32 v52, 16, v{xb+d}")
                A(f"v_and_b32 v53, 0xffff0000, v{xb+d}")
                A(f"v_mul_f32 v52, v52, v{44+2*d}")
                A(f"v_mul_f32 v53, v53, v{45+2*d}")
                A("v_cvt_pk_bf16_f32 v54, v52, v53")
                A("v_lshlrev_b32 v52, 16, v54")
                A("v_and_b32 v53, 0xffff0000, v54")
                if d == 0:
                    A(f"v_add_f32 v{acc}, v52, v53")
                else:
                    A(f"v_add_f32 v{acc}, v{acc}, v52")
                    A(f"v_add_f32 v{acc}, v{acc}, v53")

    def gate_compute2():
        A = a.e
        for mod in ("quad_perm:[1,0,3,2]", "quad_perm:[2,3,0,1]", "row_half_mirror", "row_mirror"):
            A("s_nop 1")
            A(f"v_add_f32_dpp v56, v56, v56 {mod} row_mask:0xf bank_mask:0xf")
            A(f"v_add_f32_dpp v57, v57, v57 {mod} row_mask:0xf bank_mask:0xf")
        A("s_nop 1")
        for row in range(2):
            for q in range(4):
                A(f"v_readlane_b32 s{88+row*4+q}, v{56+row}, {q*16}")
        A("s_nop 1")
        A("v_cmp_eq_u32 vcc, 0, v1")
        A("v_mov_b32 v52, s88")
        A("v_add_f32 v52, s89, v52")
        A("v_add_f32 v52, s90, v52")
        A("v_add_f32 v52, s91, v52")
        A("v_mov_b32 v53, s92")
        A("v_add_f32 v53, s93, v53")
        A("v_add_f32 v53, s94, v53")
        A("v_add_f32 v53, s95, v53")
        A("v_cndmask_b32 v52, v53, v52, vcc")
        A("v_cvt_pk_bf16_f32 v52, v52, v52")
        A("v_and_b32 v52, 0xffff0000, v52")
        A(f"v_mul_f32 v52, {f32bits(-math.log2(math.e)):#x}, v52")
        A("v_exp_f32 v52, v52")
        A("s_nop 0")
        A("v_add_f32 v52, 1.0, v52")
        A("v_rcp_f32 v52, v52")
        A("s_nop 0")
        A("v_cvt_pk_bf16_f32 v52, v52, v52")
        A("v_and_b32 v52, 0xffff0000, v52")
        A("v_sub_f32 v53, 1.0, v52")
        A("v_cvt_pk_bf16_f32 v236, v53, v52")
        A("v_lshlrev_b32 v238, 3, v1")
        A("s_mov_b64 s[94:95], 0")

    def gate_publish():
        a.e("v_mov_b32 v237, s76")
        a.e("s_mov_b64 exec, 3")
        a.vmem("buffer_store_dwordx2 v[236:237], v238, s[28:31], s10 offen sc1", "gs")
        a.e("s_mov_b64 exec, -1")

    for c in range(8):
        a.wait(vm=f"a{c}")
        a.e("s_barrier")
        if c in (0, 4):
            pf.stamp(2 if c == 0 else 3)
        SL2 = opt.get("sl2", 0)
        if SL2 and c % 2 == 0 and c // 2 < SL2:
            if c == 0:
                a.e("s_lshr_b32 s47, s2, 3")
                a.e("s_lshl_b32 s47, s47, 2")
                a.e("s_add_u32 s47, s47, s44")
                a.e("s_mul_i32 s47, s47, 12288")
                a.e("s_lshr_b32 s50, s41, 2")
                a.e("s_lshl_b32 s50, s50, 9")
                a.e("s_add_u32 s47, s47, s50")
                a.e("s_add_u32 s96, s12, s47")
                a.e("s_addc_u32 s97, s13, 0")
            else:
                a.e("s_waitcnt lgkmcnt(0)") if opt.get("sl2w", 0) else None
            for t in range(14):
                q_ = (c // 2) * 14 + t
                a.e(f"s_load_dword s93, s[96:97], {(q_ // 8) * 1024 + (q_ % 8) * 64}")
        SW = opt.get("swarm", 0)
        if SW and c in (1, 5) + ((3,) if SW == 64 else ()):
            a.e("s_lshl_b32 s47, s2, 2")
            a.e("s_add_u32 s47, s47, s44")
            if c in (1, 3):
                a.e("s_mul_i32 s47, s47, 1536")
                a.e("s_add_u32 s96, s12, s47")
                a.e("s_addc_u32 s97, s13, 0")
                for t in range(12):
                    a.e(f"s_load_dword s93, s[96:97], {t*128 + (64 if c == 3 else 0)}")
            else:
                a.e("s_lshl_b32 s47, s47, 9")
                for base in (8, 14):
                    a.e(f"s_add_u32 s96, s{base}, s47")
                    a.e(f"s_addc_u32 s97, s{base+1}, 0")
                    for t in range(4 if SW != 64 else 7):
                        a.e(f"s_load_dword s93, s[96:97], {t*(128 if SW != 64 else 64)}")
        if c == 2:
            a.vmem("buffer_load_dwordx4 v[32:35], v2, s[20:23], s92 offen", "g")
            a.vmem("buffer_load_dwordx4 v[36:39], v2, s[20:23], s92 offen offset:1024", "g")
        if c == WB0AT and opt.get("wbfirst", 0):
            issue_wb(0)
        if c + 2 < 8:
            issue_a(c + 2)
        if c == WB0AT and not opt.get("wbfirst", 0):
            issue_wb(0)
        if c == Q0AT:
            issue_q(0)
        if c == 5:
            for q_ in range(1, 3):
                issue_q(q_)
        if c == 6:
            for q_ in range(3, 6):
                issue_q(q_)
        if c == 7:
            for q_ in range(6, 8):
                issue_q(q_)
    a.wait(vm="wq")
    a.e("s_barrier")
    pf.stamp(4)
    a.e("s_waitcnt lgkmcnt(0)")
    tag_issue(58, 31)
    issue_wb(1)
    if opt.get("wb2l", 1):
        issue_wb(2)
    gate_compute()
    gate_compute2()
    tag_check(58, 31)
    a.e("v_mov_b32 v20, v10")
    a.e("v_mov_b32 v21, v11")
    a.e("s_barrier")
    pf.stamp(5)
    q_read()
    issue_wb(3, 20)
    a.wait(vm="b1")
    a.e("s_barrier")
    issue_wb(4, 20)
    a.wait(vm="b2")
    a.e("s_barrier")
    issue_wb(5, 20)
    a.wait(vm="b3")
    a.e("s_barrier")
    issue_wb(6, 20)
    a.wait(vm="b4")
    a.e("s_barrier")
    issue_wb(7, 20)
    a.wait(lg="q")
    poll_issue(17, "s48", 18, "pa")
    a.wait(vm="b5")
    a.e("s_barrier")
    a.wait(vm="b7")
    a.e("s_barrier")
    a.e("s_setprio 3")
    a.wait(vm="pa")
    a.e("v_cmp_ne_u64 vcc, s[76:77], v[18:19]")
    a.e("s_cbranch_vccz LPOLLD")
    a.c("BEGIN slow")
    poll_inline(17, "s48", 18, sleep=opt.get("psleep", 0))
    a.c("END slow")
    a.e("LPOLLD:")
    pf.stamp(9)
    first_loads()
    NTL = 2 * NKT["L"]
    GV = 128
    OBF = 160
    assert (NKT["L"] % 8) == 0

    def l_at11():
        gate_publish()

    def l_polls():
        a.vmem("buffer_load_dwordx2 v[228:229], v225, s[28:31], s74 offen sc1", "gl")
        a.vmem("buffer_load_dwordx2 v[230:231], v225, s[28:31], s74 offen offset:256 sc1", "gl")
        poll_issue(224, "s69", 244, "pb")

    def l_pf_issue():
        a.ds("ds_read_b32 v243, v242", "pf")

    def l_pf_check():
        lds_check(242, 243, 1, "pf")
        for j in range(2):
            a.ds(f"ds_read_b64 {vr(GV+12*j+8,2)}, v241 offset:{j*2560+2048}", "r0")
        for j in range(2):
            a.ds(f"ds_read_b128 {vr(GV+12*j)}, v240 offset:{j*2560}", f"r{j+1}")
            a.ds(f"ds_read_b128 {vr(GV+12*j+4)}, v240 offset:{j*2560+1024}", f"r{j+1}")

    def ob_loads(asm):
        for t in range(8):
            asm.e(f"buffer_load_dwordx4 {vr(152+4*t)}, v2, s[28:31], s{68 if t < 4 else 71} offen offset:{(t&3)*1024} sc1")

    def l_ob_try():
        a.wait(vm="pb")
        assert a.vm == []
        a.e("v_cmp_ne_u64 vcc, s[76:77], v[244:245]")
        a.e("s_mov_b32 s55, 0")
        a.e("s_cbranch_vccnz LOB_SKIP")
        ob_loads(a)
        a.e("s_mov_b32 s55, 1")
        a.e("LOB_SKIP:")

    hooks = {11: [l_at11], NTL - opt.get("lp1", 8): [l_polls], NTL - opt.get("lp2", 4): [l_ob_try], NTL - 3: [l_pf_issue], NTL - 1: [l_pf_check],
             NTL - 10: [lambda: a.ds("ds_read_b32 v243, v246", "sc")], NTL - 7: [lambda: lds_check(246, 243, 8, "sc")]}
    if opt.get("saw", 1):
        n_, g_ = 0, 0
        pat = {1: (2, 1), 2: (3, 3), 3: (1, 1), 4: (2, 2)}[opt.get("saw", 1)]
        while n_ < opt.get("lsawend", 40):
            hooks.setdefault(n_, []).append(lambda v_=3 - g_ % 4: a.e(f"s_setprio {v_}"))
            n_ += pat[g_ % 2]
            g_ += 1
        hooks.setdefault(n_, []).append(lambda: a.e("s_setprio 0"))
    else:
        for k_, v_ in ((opt.get("l2", 20), 2), (opt.get("l1", 38), 1), (opt.get("l0", 46), 0)):
            hooks.setdefault(k_, []).append(lambda v_=v_: a.e(f"s_setprio {v_}"))
    hooks.setdefault(NTL - 2, []).append(lambda: a.e("s_setprio 3"))
    hooks.setdefault(13, []).append(lambda: a.ds("ds_read_b32 v243, v246", "s5"))
    hooks.setdefault(15, []).append(lambda: lds_check(246, 243, 4, "s5"))
    WT = opt.get("wt", 0)
    if WT == 1:
        hooks.setdefault(5, []).append(lambda: wo_touch(None, 244))
    if WT == 2:
        hooks.setdefault(3, []).append(lambda: wo_touch(0, 244))
        hooks.setdefault(9, []).append(lambda: wo_touch(1, 245))
    wo_at = [n for n in range(17, NTL - 12) if n % 2 == 1]
    step_ = len(wo_at) / 16.0
    for k_ in range(16):
        hooks.setdefault(wo_at[int(k_ * step_)], []).append(wo_issue)
    srd(a, 20, 14, 512 * 512 * 2)
    attn_main("L", hooks)
    a.wait(vm="gl")
    a.e("v_cmp_ne_u32 vcc, s76, v229")
    a.e("v_cmp_ne_u32 s[96:97], s76, v231")
    a.wait(lg="r0") or a.e("s_nop 0")
    a.e("s_or_b64 s[96:97], s[96:97], vcc")
    a.e("s_cbranch_scc1 LGATE_S")
    a.e("LGATE_D:")
    cold.e("LGATE_S:")
    cold.e("s_mov_b32 s78, 0")
    cold.e("LGATE:")
    cold.e("buffer_load_dwordx2 v[228:229], v225, s[28:31], s74 offen sc1")
    cold.e("buffer_load_dwordx2 v[230:231], v225, s[28:31], s74 offen offset:256 sc1")
    cold.e("s_waitcnt vmcnt(0)")
    cold.e("v_cmp_ne_u32 vcc, s76, v229")
    cold.e("v_cmp_ne_u32 s[96:97], s76, v231")
    cold.e("s_nop 1")
    cold.e("s_or_b64 s[96:97], s[96:97], vcc")
    cold.e("s_cbranch_scc0 LGATE_D")
    spin_tail("LGATE", "LGATE_D")
    for j in range(2):
        g_, k_, t = GV + 12 * j, O + 16 * j, 16 + 4 * j
        a.e(f"v_log_f32 v{t+1}, v{g_+8}")
        a.e(f"v_log_f32 v{t}, v{k_+8}")
    for j in range(2):
        g_, k_, t = GV + 12 * j, O + 16 * j, 16 + 4 * j
        a.e(f"v_sub_f32 v{t+1}, v{t+1}, v{g_+9}")
        a.e(f"v_sub_f32 v{t}, v{t}, v{k_+9}")
    for j in range(2):
        g_, k_, t = GV + 12 * j, O + 16 * j, 16 + 4 * j
        a.e(f"v_max_f32 v{t}, v{t}, v{t+1}")
        a.e(f"v_sub_f32 v{t+1}, -v{g_+9}, v{t}")
        a.e(f"v_sub_f32 v{t}, -v{k_+9}, v{t}")
    for j in range(2):
        t = 16 + 4 * j
        a.e(f"v_exp_f32 v{t+1}, v{t+1}")
        a.e(f"v_exp_f32 v{t}, v{t}")
    for j in range(2):
        g_, k_, t = GV + 12 * j, O + 16 * j, 16 + 4 * j
        a.e(f"v_and_b32 v{t+3}, 0xffff0000, v{228+2*j}")
        a.e(f"v_mul_f32 v{t+2}, v{t+1}, v{g_+8}")
        a.e(f"v_fmac_f32 v{t+2}, v{t}, v{k_+8}")
    for j in range(2):
        t = 16 + 4 * j
        a.e(f"v_rcp_f32 v{t+2}, v{t+2}")
    a.e("s_nop 0")
    for j in range(2):
        g_, k_, t = GV + 12 * j, O + 16 * j, 16 + 4 * j
        a.e(f"v_mul_f32 v{t+2}, v{t+2}, v{t+3}")
        a.e(f"v_mul_f32 v{t+1}, v{t+1}, v{t+2}")
        a.e(f"v_mul_f32 v{t}, v{t}, v{t+2}")
        for r in range(8):
            a.e(f"v_mul_f32 v{k_+r}, v{t}, v{k_+r}")
        a.wait(lg=f"r{j+1}")
        for r in range(8):
            a.e(f"v_fmac_f32 v{k_+r}, v{t+1}, v{g_+r}")
        for r in range(4):
            a.e(f"v_cvt_pk_bf16_f32 v{24+4*j+r}, v{k_+2*r}, v{k_+2*r+1}")
        a.vmem(f"buffer_store_dwordx4 {vr(24+4*j)}, v2, s[28:31], s{73 if j == 0 else 53} offen sc1", "oa")
    pf.stamp(13)
    a.e("s_cmp_eq_u32 s55, 0")
    a.e("s_cbranch_scc1 LOB_LATE")
    a.e("s_waitcnt vmcnt(2)")
    a.e("s_branch PHASE3")
    cold.e("LOB_LATE:")
    cold.e("s_mov_b32 s78, 0")
    cold.e("LOB_L:")
    cold.e("buffer_load_dwordx2 v[244:245], v224, s[28:31], s69 offen sc1")
    cold.e("s_waitcnt vmcnt(0)")
    cold.e("v_cmp_ne_u64 vcc, s[76:77], v[244:245]")
    cold.e("s_cbranch_vccz LOB_D")
    cold.e("s_add_u32 s78, s78, 1")
    cold.e(f"s_cmp_lt_u32 s78, {SPIN}")
    cold.e("s_cbranch_scc1 LOB_L")
    cold.e("LOB_D:")
    ob_loads(cold)
    cold.e("s_waitcnt vmcnt(0)")
    cold.e("s_branch PHASE3")
    a.c("END loader")

    a.c("BEGIN gemm")
    a.e("GEMM:")
    a.vm = []
    a.lg = []
    if opt.get("cpf", 1):
        a.e("s_getpc_b64 s[88:89]")
        a.e("CPF_PC:")
        a.e(f"s_sub_u32 s88, s88, CPF_PC-{NAME}_kernel")
        a.e("s_subb_u32 s89, s89, 0")
        a.e("s_lshl_b32 s90, s48, 2")
        a.e("s_add_u32 s90, s90, s44")
        a.e("s_mul_i32 s90, s90, 320")
        a.e(f"s_min_u32 s90, s90, K_LAST-{NAME}_kernel-320")
        a.e("s_add_u32 s88, s88, s90")
        a.e("s_addc_u32 s89, s89, 0")
        for t in range(5):
            a.e(f"s_load_dword s{(91, 24, 25, 26, 27)[t]}, s[88:89], {t*64}")
    a.e("s_lshr_b32 s92, s44, 1")
    a.e("s_and_b32 s93, s44, 1")
    a.e("v_bfe_u32 v19, v1, 1, 3")
    a.e("v_xor_b32 v19, v19, v4")
    a.e("s_lshl_b32 s47, s92, 5")
    a.e("v_add_u32 v12, s47, v5")
    a.e("v_lshlrev_b32 v12, 7, v12")
    for ks in range(4):
        a.e(f"v_xor_b32 v13, {ks*2}, v19")
        a.e(f"v_lshl_add_u32 v{8+ks}, v13, 4, v12")
    a.e("v_bfe_u32 v12, v1, 2, 2")
    a.e("v_lshl_add_u32 v13, v4, 3, v12")
    a.e("v_lshlrev_b32 v13, 7, v13")
    a.e("v_bfe_u32 v14, v1, 4, 1")
    a.e("v_lshlrev_b32 v14, 1, v14")
    a.e("v_bfe_u32 v15, v1, 1, 1")
    a.e("v_add_u32 v14, v14, v15")
    a.e("v_bfe_u32 v15, v1, 3, 1")
    a.e("v_xor_b32 v15, s93, v15")
    a.e("v_lshl_add_u32 v14, v15, 2, v14")
    a.e("v_lshl_add_u32 v13, v14, 4, v13")
    a.e("v_and_b32 v15, 1, v1")
    a.e("v_lshl_add_u32 v24, v15, 3, v13")
    a.e("v_add_u32 v25, 0xc000, v24")
    a.e("v_add_u32 v26, 0x18000, v24")
    a.e("v_add_u32 v27, 0x24000, v24")
    a.e("s_lshl_b32 s10, s40, 1")
    a.e("s_add_u32 s10, s10, s92")
    a.e("s_lshl_b32 s11, s41, 1")
    a.e("s_add_u32 s11, s11, s93")
    a.e("s_lshl_b32 s82, s11, 18")
    a.e("s_lshl_b32 s83, s10, 11")
    a.e("s_add_u32 s82, s82, s83")
    a.e("s_add_u32 s83, s82, 0x20000")
    a.e("s_lshl_b32 s80, s93, 12")
    a.e("s_lshl_b32 s47, s92, 10")
    a.e("s_add_u32 s80, s80, s47")
    a.e(f"s_add_u32 s80, s80, {QX}")
    a.e("v_bfe_u32 v12, v1, 4, 1")
    a.e("v_lshlrev_b32 v12, 17, v12")
    a.e("v_lshl_add_u32 v12, v4, 8, v12")
    a.e("v_and_b32 v13, 15, v1")
    a.e("v_lshl_add_u32 v16, v13, 4, v12")
    a.e(f"s_mov_b32 s85, {QSCALE:#x}")
    a.e("s_lshl_b32 s47, s11, 6")
    a.e("s_add_u32 s47, s47, s10")
    a.e(f"s_lshl_b32 s86, s47, {FSH}")
    a.e(f"s_add_u32 s86, s86, {F_A:#x}")
    a.e(f"s_add_u32 s3, s86, {F_H-F_A:#x}")
    a.e("s_lshl_b32 s87, s47, 12")
    a.e(f"s_add_u32 s87, s87, {HALO:#x}")
    a.e("s_cmp_eq_u32 s10, 0")
    a.e("s_cselect_b32 s47, 0, 4096")
    a.e("s_sub_u32 s79, s87, s47")
    a.e("s_lshl_b32 s75, s10, 8")
    a.e(f"s_add_u32 s75, s75, {GT:#x}")
    a.e("s_mov_b64 s[94:95], 0")
    a.e(f"v_mov_b32 v42, {CTR}")
    a.e("v_mov_b32 v43, 1")
    attn_ssetup("G")
    a.e("s_waitcnt lgkmcnt(0)")
    srd(a, 28, 38, WS_BYTES)
    srd(a, 32, 36, 256)
    srd(a, 20, 8, 512 * 512 * 2)
    if opt.get("s3", 0):
        a.e("s_lshr_b32 s47, s2, 3")
        a.e("s_lshl_b32 s47, s47, 2")
        a.e("s_add_u32 s47, s47, s44")
        a.e("s_cmp_lt_u32 s47, 48")
        a.e("s_cselect_b32 s24, s6, s12")
        a.e("s_cselect_b32 s25, s7, s13")
        a.e("s_cselect_b32 s50, 0, 48")
        a.e("s_sub_u32 s50, s47, s50")
        a.e("s_lshl_b32 s50, s50, 15")
        a.e("s_add_u32 s50, s50, 384")
        a.e("s_cmp_lt_u32 s41, 3")
        a.e(f"s_cselect_b32 s26, {512*1536*2:#x}, 0")
        a.e("s_mov_b32 s27, 0x20000")
        a.e("v_lshlrev_b32 v33, 10, v5")
        a.vmem("buffer_load_dword v32, v33, s[24:27], s50 offen", "s3")
    TCH = opt.get("touch", 0)
    if TCH:
        PSH = opt.get("psh", 12)
        a.e("s_lshr_b32 s47, s2, 3")
        a.e("s_lshl_b32 s47, s47, 2")
        a.e("s_add_u32 s47, s47, s44")
        a.e(f"s_lshl_b32 s50, s47, {PSH}")
        a.e(f"v_lshlrev_b32 v33, {PSH+7}, v1")
        k_ = 0
        for bit, base, size in ((1, 12, 512 * 1536 * 2), (2, 8, 512 * 512 * 2), (2, 14, 512 * 512 * 2), (4, 38, FL + 0x80000),
                                (8, 18, 2048 * 512 * 2)):
            if TCH & bit:
                srd(a, 24, base, size)
                a.vmem(f"buffer_load_dword v{34+k_}, v33, s[24:27], s50 offen", "s3")
                k_ += 1
    a.e("s_setprio 3")

    XR, ACC, WF = 128, 80, 44

    def waddr(off):
        b = off // 49152
        return 24 + b, off - b * 49152

    def wfrag(dst, base, ks):
        L = []
        for sec in range(2):
            r, o = waddr(base + ks * 2048 + sec * 512)
            L.append(f"ds_read_b64_tr_b16 {vr(dst+sec*2,2)}, v{r} offset:{o}")
        return L

    def mf(seg, st, w):
        acc = ACC + seg * 16
        x = vr(XR + st * 4)
        cc = "0" if st == 0 else vr(acc, 16)
        if seg < 2:
            return f"v_mfma_f32_32x32x16_bf16 {vr(acc,16)}, {vr(w)}, {x}, {cc}"
        return f"v_mfma_f32_32x32x16_bf16 {vr(acc,16)}, {x}, {vr(w)}, {cc}"

    def pack(seg, half, t):
        b = ACC + seg * 16 + half * 8
        if seg == 0:
            for r in range(8):
                a.e(f"v_mul_f32 v{b+r}, s85, v{b+r}")
        for r in range(4):
            a.e(f"v_cvt_pk_bf16_f32 v{t+r}, v{b+2*r}, v{b+2*r+1}")
        return t

    def rdA(st):
        if st >= 32:
            return []
        c, ks, fs = st // 4, st % 4, WF + (st % 4) * 8
        base = (c % 3) * SLOT
        return [f"ds_read_b128 {vr(XR + st*4)}, v{8+ks} offset:{base}"] + \
            wfrag(fs, base + 8192, ks) + wfrag(fs + 4, base + 16384, ks)

    a.e("s_barrier")
    pf.stamp(2)
    for st in range(2):
        for r in rdA(st):
            a.ds(r, f"f{st}")
    for st in range(32):
        c, ks = st // 4, st % 4
        a.wait(lg=f"f{st+1}" if (ks == 2 and c < 5) else f"f{st}")
        if ks == 2 and c < 7:
            a.e("s_barrier")
            if c == 3:
                pf.stamp(3)
        fs = WF + (st % 4) * 8
        Rd = rdA(st + 2)
        a.e(mf(1, st, fs))
        for r in Rd[:3]:
            a.ds(r, f"f{st+2}")
        a.e(mf(2, st, fs + 4))
        for r in Rd[3:]:
            a.ds(r, f"f{st+2}")
    pf.stamp(4)
    a.wait(vm="s3")
    a.nop(11)
    for half in range(2):
        t = pack(1, half, 32 + half * 4)
        a.vmem(f"buffer_store_dwordx4 {vr(t)}, v2, s[28:31], s{82+half} offen sc1", "st")
    for half in range(2):
        t = pack(2, half, 8 + half * 4)
        a.vmem(f"buffer_store_dwordx4 {vr(t)}, v16, s[28:31], s82 offen offset:{1024+half*512} sc1", "st")
    tag_issue(28, 31)
    a.e("s_barrier")
    a.e("v_lshl_add_u32 v18, v1, 2, v42")
    a.e("s_mov_b64 exec, 0xff")
    a.ds("ds_write_b32 v18, v31", "ci")
    a.e("s_mov_b64 exec, -1")

    def rdQ(st):
        return wfrag(WF + (st % 9) * 4, WQ + (st // 4) * 8192, st % 4) if st < 32 else []

    for st in range(6):
        for r in rdQ(st):
            a.ds(r, f"f{st}")
    for st in range(32):
        a.wait(lg=f"f{st}")
        a.e(mf(0, st, WF + (st % 9) * 4))
        for r in rdQ(st + 6):
            a.ds(r, f"f{st+6}")
    a.e("v_add_u32 v18, s80, v2")
    a.nop(11)
    for half in range(2):
        t = pack(0, half, 32 + half * 4)
        a.ds(f"ds_write_b128 v18, {vr(t)} offset:{half*2048}", "qw")
    a.wait(lg="qw")
    a.e("s_barrier")
    q_read()
    a.e(f"s_setprio {opt.get('bprio', 3)}")

    pend = []

    def queue_wb(c):
        for it in w_items(WBR[c % 5], (0, 1, 2), 40, 24, 90, 81):
            pend.append((it, f"b{c}"))
        pend.append(None)

    def drain(n):
        while pend and n > 0:
            it = pend.pop(0)
            if it is None:
                w_adv(90)
                continue
            a.e(it[0][0])
            a.e("s_nop 0")
            a.vmem(it[0][1], it[1])
            n -= 1
        if pend and pend[0] is None:
            pend.pop(0)
            w_adv(90)

    def sbar(target, vmtag, arrive=True, sleep=0, off=0):
        uid[0] += 1
        L = f"SB{uid[0]}"
        if vmtag:
            a.wait(vm=vmtag)
        a.e("s_waitcnt lgkmcnt(0)")
        a.lg = []
        if arrive:
            sb_arrive(42, 43)
        a.e("s_mov_b32 s78, 0")
        a.e(f"{L}:")
        if sleep:
            a.e(f"s_sleep {sleep}")
        a.e(f"ds_read_b32 v32, v42 offset:{off}")
        a.e("s_add_u32 s78, s78, 1")
        a.e("s_waitcnt lgkmcnt(0)")
        a.e("v_readfirstlane_b32 s47, v32")
        a.e(f"s_cmp_ge_u32 s78, {SPIN*16}")
        a.e(f"s_cselect_b32 s50, 0, {target}")
        a.e("s_cmp_lt_u32 s47, s50")
        a.e(f"s_cbranch_scc1 {L}")
        a.lg = []

    def rdB(st):
        if st >= 32:
            return []
        c, ks, fs = st // 4, st % 4, WF + (st % 3) * 12
        return sum((wfrag(fs + seg * 4, WBR[c % 5] + seg * 8192, ks) for seg in range(3)), [])

    PISS = opt.get("piss", 19)
    pf.stamp(7)
    for st in range(2):
        for r in rdB(st):
            a.ds(r, f"f{st}")
    for st in range(32):
        if st == opt.get("flagat", 2):
            tag_check(28, 31)
            flag_store("s86", 34)
            pf.stamp(5)
        a.wait(lg=f"f{st}")
        if st in (2, 6, 10, 14, 18, opt.get("lastbar", 22)):
            a.e("s_barrier")
        if st == PISS:
            poll_issue(17, "s48", 18, "pa")
        fs = WF + (st % 3) * 12
        Rd = rdB(st + 2)
        fill = ones_init(st - 17, 30) if 17 <= st < 25 else []
        for mi in range(3):
            a.e(mf(mi, st, fs + mi * 4))
            for r in Rd[mi * 2:(mi + 1) * 2]:
                a.ds(r, f"f{st+2}")
            for t in fill[mi * 3:(mi + 1) * 3]:
                a.e(t)
        if st == opt.get("pchk", 27):
            poll_check(17, "s48", 18, "pa")
            pf.stamp(9)
            first_loads()
    sb_arrive(42, 43)
    pf.stamp(6)
    a.e(f"s_setprio {opt.get('gprio', 3)}")
    a.nop(8)
    pack(1, 0, PKB + 8)
    pack(1, 1, PKB + 12)
    pack(2, 1, PKB + 20)
    pack(2, 0, PKB + 16)
    pack(0, 0, PKB)
    pack(0, 1, PKB + 4)
    attn_vsetup("G")
    a.e(f"s_sub_u32 s88, s3, {1 << FSH}")
    a.e("s_cmp_eq_u32 s10, 0")
    a.e("s_cselect_b32 s88, s3, s88")
    NTG = 2 * NKG
    srd(a, 24, 38, WS_BYTES)

    def g_at11():
        a.wait(vm="hs")
        flag_store("s3", 228)

    def g_halo(k):
        return lambda: a.vmem(f"buffer_store_dwordx4 {vr(PKB+(8, 12, 20)[k])}, v2, s[28:31], s87 offen offset:{k*1024} sc1", "hs")

    def g_sent():
        a.e("s_lshl_b32 s89, s10, 6")
        a.e("s_lshl_b32 s47, s11, 1")
        a.e("s_add_u32 s89, s89, s47")
        a.e("s_lshl_b32 s89, s89, 10")
        a.e(f"s_add_u32 s89, s89, {OF:#x}")
        for r in range(4):
            a.e(f"v_mov_b32 v{228+r}, -1")
        a.vmem("buffer_store_dwordx4 v[228:231], v2, s[24:27], s89 offen sc1", "sn")

    def g_sent2():
        a.vmem("buffer_store_dwordx4 v[228:231], v2, s[24:27], s89 offen offset:1024 sc1", "sn")

    def g_sent_done():
        a.wait(vm="sn")
        a.e("v_mov_b32 v228, 1")
        a.e("v_cndmask_b32 v228, v228, 0, s[94:95]")
        sb_arrive(224, 228)

    def g_hpoll():
        a.e("v_mov_b32 v230, 0")
        poll_issue(230, "s88", 228, "hp")

    def g_hload():
        poll_check(230, "s88", 228, "hp")
        for t in range(3):
            a.vmem(f"buffer_load_dwordx4 {vr(128+4*t)}, v2, s[28:31], s79 offen offset:{t*1024} sc1", "hl")
        poll_issue(225, "s75", 228, "gl")

    assert NKG % 8 == 0
    H0, HS = opt.get("h0", 6), opt.get("hstep", 4)
    hooks = {1: [lambda: a.ds("ds_read_b32 v228, v224", "s5")], 3: [lambda: lds_check(224, 228, 4, "s5")],
             H0: [g_halo(0)], H0 + HS: [g_halo(1)], H0 + 2 * HS: [g_halo(2)], H0 + 3 * HS: [g_sent], H0 + 4 * HS: [g_sent2],
             H0 + 4 * HS + 12: [g_at11, g_sent_done], NTG - 13: [g_hpoll], NTG - 7: [g_hload]}
    if WT == 1:
        hooks.setdefault(5, []).append(lambda: wo_touch(None, 230))
    if WT == 2:
        hooks.setdefault(1, []).append(lambda: wo_touch(0, 230))
        hooks.setdefault(5, []).append(lambda: wo_touch(1, 231))
    wo_at = [n for n in range(17 if WT else 5, NTG - 14) if n % 2 == 1]
    step_ = len(wo_at) / 16.0
    for k_ in range(16):
        hooks.setdefault(wo_at[int(k_ * step_)], []).append(wo_issue)
    if opt.get("saw", 1):
        gs = {1: (2, 2), 2: (4, 4), 3: (1, 2), 4: (3, 2)}[opt.get("saw", 1)]
        n_, g_ = 0, 0
        while n_ < NTG:
            hooks.setdefault(n_, []).append(lambda v_=3 - g_ % 4: a.e(f"s_setprio {v_}"))
            n_ += gs[g_ % 2]
            g_ += 1
    else:
        for k_, v_ in ((opt.get("g2", 36), 2), (opt.get("g1", 56), 1)):
            hooks.setdefault(k_, []).append(lambda v_=v_: a.e(f"s_setprio {v_}"))
    attn_main("G", hooks)
    a.e("s_setprio 3")
    a.e("s_mul_i32 s47, s44, 5120")
    a.e(f"s_add_u32 s47, s47, {CMB}")
    a.e("v_add_u32 v8, s47, v2")
    a.e("v_lshlrev_b32 v9, 3, v1")
    a.e("v_add_u32 v9, s47, v9")
    for j in range(2):
        a.ds(f"ds_write_b128 v8, {vr(O+16*j)} offset:{j*2560}", "w")
        a.ds(f"ds_write_b128 v8, {vr(O+16*j+4)} offset:{j*2560+1024}", "w")
        a.ds(f"ds_write_b64 v9, {vr(O+16*j+8,2)} offset:{j*2560+2048}", "w")
    a.e("s_lshl_b32 s47, s44, 2")
    a.e(f"s_add_u32 s47, s47, {CTR+16}")
    a.e("v_mov_b32 v14, s47")
    a.e("v_mov_b32 v15, 1")
    a.ds("ds_write_b32 v14, v15", "w")

    HK, HV = 128, 136
    MC, MP = 80, 96
    a.e("v_lshlrev_b32 v10, 2, v4")
    a.e("v_sub_u32 v10, v5, v10")
    a.e("v_add_u32 v10, 18, v10")
    a.e("v_mov_b32 v12, 0x5555")
    a.e("v_mov_b32 v13, 0")
    a.e("v_lshlrev_b64 v[12:13], v10, v[12:13]")
    a.e("v_not_b32 v12, v12")
    a.e("v_not_b32 v13, v13")
    a.e("s_cmp_eq_u32 s10, 0")
    a.e("s_cselect_b32 s47, -1, 0")
    a.e("v_or_b32 v12, s47, v12")
    a.e(f"s_mov_b32 s47, {NEGBIG:#x}")
    for r in range(16):
        cbit = (r & 3) + 8 * (r >> 2)
        a.e(f"v_bfe_i32 v{MC+r}, v13, {cbit}, 1")
        a.e(f"v_and_b32 v{MC+r}, s47, v{MC+r}")
    SCs, SPs = [144, 176], [160, 192]
    a.nop(2)
    for hh in range(2):
        a.e(f"v_mfma_f32_32x32x16_bf16 {vr(SCs[hh],16)}, {vr(PKB+8+4*hh)}, {vr(PKB+4*hh)}, {vr(MC,16)}")
    for r in range(8, 16):
        cbit = (r & 3) + 8 * (r >> 2)
        a.e(f"v_bfe_i32 v{MP+r}, v12, {cbit}, 1")
        a.e(f"v_and_b32 v{MP+r}, s47, v{MP+r}")
    ONES = 140
    for r in range(4):
        a.e(f"v_mov_b32 v{ONES+r}, 0x3f803f80")
    a.wait(vm=["hl", "gl"])
    for hh in range(2):
        a.e(f"v_mfma_f32_32x32x16_bf16 {vr(SPs[hh],16)}, {vr(HK+4*hh)}, {vr(PKB+4*hh)}, {vr(MP,16)}")
    poll_check(225, "s75", 228, "none", gate=True)
    a.e("v_lshlrev_b32 v228, 16, v228")
    a.e("s_lshl_b32 s80, s10, 6")
    a.e("s_lshl_b32 s47, s11, 1")
    a.e("s_add_u32 s80, s80, s47")
    a.e("s_add_u32 s80, s80, 32")
    a.e("s_lshl_b32 s80, s80, 10")
    a.e(f"s_add_u32 s80, s80, {OF:#x}")
    a.e("s_lshl_b32 s81, s10, 4")
    a.e("s_add_u32 s81, s81, s11")
    a.e(f"s_lshl_b32 s81, s81, {FSH}")
    a.e(f"s_add_u32 s81, s81, {F_OB:#x}")
    LP = [32, 112]
    LO = [48, 64]
    LS = [80, 96]
    a.wait(lg="w")
    for hh in range(2):
        vals = [SCs[hh] + r for r in range(16)] + [SPs[hh] + 8 + r for r in range(8)]
        a.e(f"v_max3_f32 v10, v{vals[0]}, v{vals[1]}, v{vals[2]}")
        for i in range(3, 23, 2):
            a.e(f"v_max3_f32 v10, v10, v{vals[i]}, v{vals[i+1]}")
        a.e(f"v_max_f32 v10, v10, v{vals[23]}")
        a.e("v_mov_b32 v11, v10")
        a.nop(2)
        a.e("v_permlane32_swap_b32 v10, v11")
        a.nop(2)
        a.e("v_max_f32 v10, v10, v11")
        for v in vals:
            a.e(f"v_sub_f32 v{v}, v{v}, v10")
        for v in vals:
            a.e(f"v_exp_f32 v{v}, v{v}")
        a.e("s_nop 0")
        for i in range(12):
            a.e(f"v_cvt_pk_bf16_f32 v{LP[hh]+i}, v{vals[2*i]}, v{vals[2*i+1]}")
        a.nop(2)
        for i, va in enumerate((PKB + 16, PKB + 20, HV)):
            cc = "0" if i == 0 else vr(LO[hh], 16)
            a.e(f"v_mfma_f32_32x32x16_bf16 {vr(LO[hh],16)}, {vr(va)}, {vr(LP[hh]+4*i)}, {cc}")
        for i in range(3):
            cc = "0" if i == 0 else vr(LS[hh], 16)
            a.e(f"v_mfma_f32_32x32x16_bf16 {vr(LS[hh],16)}, {vr(ONES)}, {vr(LP[hh]+4*i)}, {cc}")
    for hh in range(2):
        a.e(f"v_rcp_f32 v10, v{LS[hh]}")
        a.e("s_nop 0")
        a.e("v_mul_f32 v10, v10, v228")
        o = LO[hh] + 8 * hh
        for r in range(8):
            a.e(f"v_mul_f32 v{o+r}, v10, v{o+r}")
        for r in range(4):
            a.e(f"v_cvt_pk_bf16_f32 v{208+4*hh+r}, v{o+2*r}, v{o+2*r+1}")
        a.vmem(f"buffer_store_dwordx4 {vr(208+4*hh)}, v2, s[28:31], s80 offen offset:{hh*1024} sc1", "ob")
    wo_addr()
    a.wait(vm="ob")
    flag_store("s81", 12)
    pf.stamp(8)
    a.e("s_setprio 0")
    poll_inline(224, "s69", 244, sleep=4)
    ob_loads(a)
    a.e("s_waitcnt vmcnt(0)")
    pf.stamp(13)
    a.e("s_setprio 3")
    a.c("END gemm")

    a.e("PHASE3:")
    a.vm = []
    a.lg = []
    A3 = 48
    OBF, OAF = 152, 80
    W3 = [184]

    def wslot(t):
        return W3[0] + ((t % 4) if W3[0] == 184 else t) * 8

    def wreads(t, base):
        for j in range(2):
            for sec in range(2):
                a.ds(f"ds_read_b64_tr_b16 {vr(wslot(t)+j*4+sec*2,2)}, v{base+j} offset:{t*2048+sec*1024}", f"w{t}")

    def mm3(t, of, first):
        for j in range(2):
            cc = "0" if first else vr(A3 + 16 * j, 16)
            a.e(f"v_mfma_f32_32x32x16_bf16 {vr(A3+16*j,16)}, {vr(wslot(t)+j*4)}, {vr(of+4*t)}, {cc}")

    def oa_load(t, asm):
        return f"buffer_load_dwordx4 {vr(OAF+4*t)}, v2, s[28:31], s{67 if t < 4 else 70} offen offset:{(t&3)*1024} sc1"

    a.e("s_barrier")
    if opt.get("tailp"):
        pf.stamp(2)
    for t in range(3):
        wreads(t, 234)
    for t in range(8):
        a.wait(lg=f"w{t}")
        mm3(t, OBF, t == 0)
        if t + 3 < 8:
            wreads(t + 3, 234)
        if t == opt.get("oaat", 6):
            for u in range(8):
                a.vmem(oa_load(u, a), f"oa{u}")
    W3[0] = 128
    a.e("s_barrier")
    if opt.get("tailp"):
        pf.stamp(3)
    for t in range(8):
        if t >= 3:
            a.wait(lg=f"w{t-3}")
        wreads(t, 232)
    srd(a, 32, 18, 2048 * 512 * 2)
    for t in range(1, 4):
        a.e(f"s_xor_b32 s47, s63, {2*t}")
        a.e("s_mul_i32 s47, s47, 6144")
        a.e(f"s_add_u32 s47, s47, {RED + (t-1)*2048}")
        a.e(f"v_add_u32 v{8+t}, s47, v2")
    a.e("s_mul_i32 s47, s63, 6144")
    a.e(f"s_add_u32 s47, s47, {RED}")
    a.e("v_add_u32 v8, s47, v2")
    a.e("v_lshlrev_b32 v12, 10, v5")
    a.e("v_lshl_add_u32 v12, v4, 5, v12")
    a.wait(lg="w7")
    for t in range(8):
        o = OAF + 4 * t
        a.wait(vm=f"oa{t}")
        a.e(f"v_max3_u32 v13, v{o}, v{o+1}, v{o+2}")
        a.e(f"v_max_u32 v13, v13, v{o+3}")
        a.e("v_cmp_eq_u32 vcc, -1, v13")
        a.e(f"s_cbranch_vccnz OA{t}_S")
        a.e(f"OA{t}_D:")
        mm3(t, OAF, False)
        cold.e(f"OA{t}_S:")
        cold.e("s_mov_b32 s78, 0")
        cold.e(f"OA{t}:")
        for u in range(t, 8):
            cold.e(oa_load(u, cold))
        cold.e(f"s_waitcnt vmcnt({7-t})")
        cold.e(f"v_max3_u32 v13, v{o}, v{o+1}, v{o+2}")
        cold.e(f"v_max_u32 v13, v13, v{o+3}")
        cold.e("v_cmp_eq_u32 vcc, -1, v13")
        cold.e(f"s_cbranch_vccz OA{t}_D")
        spin_tail(f"OA{t}", f"OA{t}_D")
    if opt.get("tailp"):
        pf.stamp(4)
    a.nop(11)
    for t in (1, 2, 3):
        a.ds(f"ds_write_b128 v{8+t}, {vr(A3+8*t)}", "w")
        a.ds(f"ds_write_b128 v{8+t}, {vr(A3+8*t+4)} offset:1024", "w")
    a.wait(lg="w")
    a.e("s_barrier")
    if opt.get("tailp"):
        pf.stamp(5)
    for t in range(3):
        a.ds(f"ds_read_b128 {vr(192+8*t)}, v8 offset:{t*2048}", f"r{t}")
        a.ds(f"ds_read_b128 {vr(196+8*t)}, v8 offset:{t*2048+1024}", f"r{t}")
    for t in range(3):
        a.wait(lg=f"r{t}")
        for r in range(8):
            a.e(f"v_add_f32 v{A3+r}, v{A3+r}, v{192+8*t+r}")
    for r in range(4):
        a.e(f"v_cvt_pk_bf16_f32 v{112+r}, v{A3+2*r}, v{A3+2*r+1}")
    a.e(f"buffer_store_dwordx4 v[112:115], v12, s[32:35], s72 offen{' sc1' if opt.get('outsc1', 0) else ''}")
    if opt.get("padto"):
        a.e("PADL:")
        a.e("s_memrealtime s[98:99]")
        a.e("s_waitcnt lgkmcnt(0)")
        a.e("s_sub_u32 s98, s98, s76")
        a.e(f"s_cmp_lt_u32 s98, {opt['padto']}")
        a.e("s_cbranch_scc1 PADL")
    pf.finish()
    a.e("K_END:")
    a.e("s_endpgm")
    a.c("BEGIN slow")
    a.lines += cold.lines
    a.c("END slow")
    a.e("K_LAST:")
    a.e("s_endpgm")
    return a


DOC = """;
"""


def build(opt=None):
    opt = opt or {}
    ref = open(os.path.join(os.path.dirname(__file__), "..", "cdna_kernels", NAME + ".s.ref")).read()
    head = [l for l in ref.splitlines() if l.startswith(";") and "@launch" not in l]
    out = "\n".join(head) + "\n"
    out += "; @launch grid=(256,1,1) block=(512,1,1) lds=163840\n"
    out += DOC
    out += '.amdgcn_target "amdgcn-amd-amdhsa--gfx950"\n'
    a = gen(opt)
    probs = a.check("k", {"L": {"gemm", "slow"}, "G": {"loader", "slow"}})
    for p in probs:
        print("HAZARD", p)
    out += header(NAME + "_kernel") + a.text()
    out += descriptor(NAME + "_kernel", 256, 102)
    return out, not probs


if __name__ == "__main__":
    opt = {}
    dst = os.path.join(os.path.dirname(__file__), "..", "cdna_kernels", NAME + ".s")
    for arg in sys.argv[1:]:
        if "=" in arg:
            k, v = arg.split("=")
            opt[k] = int(v)
        else:
            dst = arg
    txt, ok = build(opt)
    open(dst, "w").write(txt)
    print("wrote", dst, len(txt), "bytes", "hazards OK" if ok else "HAZARDS FOUND")
```

```python
import math
import struct
import sys
import os
sys.path.insert(0, os.path.dirname(__file__))
from asmlib import Asm, descriptor, header

NAME = "gated_mix__mha_block__sliding_local_dilated__prompt"

KVA = 0x000000
HALO = 0x600000
OF = 0xC00000
FL = 0x1000000
GT = FL + 0xC000
F_A, F_H, F_OB = FL + 0x20000, FL + 0x40000, FL + 0x60000
FSH = 7
PROF = 0x1800000
WS_BYTES = 268435456
SPIN = 1 << 16

SLOT = 24576
WQ = 98304
WBR = [73728, 0, 24576, 98304, 122880]
CTR = 65536
QX = 57344
WOA, WOB = 0, 98304
CMB = 77824
RED = 98304
WROW = 64 * 3072


def f32bits(x):
    return struct.unpack("<I", struct.pack("<f", x))[0]


QSCALE = f32bits(0.25 * math.log2(math.e))
NEGBIG = f32bits(-1.0e30)


def vr(b, n=4):
    return f"v[{b}:{b+n-1}]"


def srd(a, d, base, nbytes):
    a.e(f"s_mov_b32 s{d}, s{base}")
    a.e(f"s_mov_b32 s{d+1}, s{base+1}")
    a.e(f"s_mov_b32 s{d+2}, {nbytes:#x}")
    a.e(f"s_mov_b32 s{d+3}, 0x20000")


class Prof:
    def __init__(self, a, on):
        self.a, self.on = a, on

    def stamp(self, i, rt=False):
        if not self.on:
            return
        a = self.a
        rt = rt or self.on >= 2
        a.e(f"s_mem{'real' if rt else ''}time s[98:99]")
        a.e("s_waitcnt lgkmcnt(0)")
        if i < 2:
            a.e(f"s_mov_b32 s{100+i}, s98")
        else:
            a.e(f"v_writelane_b32 v0, s98, {i}")
        a.lg = []

    def finish(self):
        if not self.on:
            return
        a = self.a
        a.e("s_waitcnt vmcnt(0)")
        self.stamp(14)
        self.stamp(15, True)
        a.e("v_writelane_b32 v0, s100, 0")
        a.e("v_writelane_b32 v0, s101, 1")
        a.e("s_mov_b64 exec, 0xffff")
        a.e("v_lshlrev_b32 v24, 2, v1")
        a.e("s_lshl_b32 s98, s2, 3")
        a.e("s_add_u32 s98, s98, s63")
        a.e("s_lshl_b32 s98, s98, 6")
        a.e(f"s_add_u32 s98, s98, {PROF:#x}")
        a.e("buffer_store_dword v0, v24, s[28:31], s98 offen")


def gen(opt):
    a = Asm()
    pf = Prof(a, opt.get("prof"))
    uid = [0]
    SLP = opt.get("sleep", 2)

    cold = Asm()

    def spin_tail(L, D):
        cold.e("s_add_u32 s78, s78, 1")
        cold.e(f"s_cmp_lt_u32 s78, {SPIN}")
        cold.e(f"s_cbranch_scc1 {L}")
        cold.e(f"s_branch {D}")

    def poll_issue(vaddr, soff, tmp, tag):
        a.vmem(f"buffer_load_dwordx2 {vr(tmp,2)}, v{vaddr}, s[28:31], {soff} offen sc1", tag)

    def poll_check(vaddr, soff, tmp, tag, gate=False):
        uid[0] += 1
        L, D = f"POLL{uid[0]}", f"POLLD{uid[0]}"
        cmp = f"v_cmp_ne_u32 vcc, s76, v{tmp+1}" if gate else f"v_cmp_ne_u64 vcc, s[76:77], {vr(tmp,2)}"
        a.wait(vm=tag)
        a.e(cmp)
        a.e(f"s_cbranch_vccnz {L}_S")
        a.e(f"{D}:")
        cold.e(f"{L}_S:")
        cold.e("s_mov_b32 s78, 0")
        cold.e(f"{L}:")
        cold.e(f"buffer_load_dwordx2 {vr(tmp,2)}, v{vaddr}, s[28:31], {soff} offen sc1")
        cold.e("s_waitcnt vmcnt(0)")
        cold.e(cmp)
        cold.e(f"s_cbranch_vccz {D}")
        cold.e(f"s_sleep {SLP}")
        spin_tail(L, D)

    def poll_inline(vaddr, soff, tmp, sleep=0):
        uid[0] += 1
        L, D = f"POLL{uid[0]}", f"POLLD{uid[0]}"
        a.e("s_mov_b32 s78, 0")
        a.e(f"{L}:")
        if sleep:
            a.e(f"s_sleep {sleep}")
        a.e(f"buffer_load_dwordx2 {vr(tmp,2)}, v{vaddr}, s[28:31], {soff} offen sc1")
        a.e("s_add_u32 s78, s78, 1")
        a.e(f"s_cmp_lt_u32 s78, {SPIN}")
        a.e("s_cselect_b64 s[96:97], -1, 0")
        a.e("s_waitcnt vmcnt(0)")
        a.e(f"v_cmp_ne_u64 vcc, s[76:77], {vr(tmp,2)}")
        a.e("s_nop 0")
        a.e("s_and_b64 s[96:97], vcc, s[96:97]")
        a.e(f"s_cbranch_scc1 {L}")
        a.vm = []

    def tag_issue(tmp, vz):
        a.vmem(f"buffer_load_dwordx2 {vr(tmp,2)}, v{vz}, s[32:35], 0 offen sc1", "tag")

    def tag_check(tmp, vz):
        uid[0] += 1
        L, D = f"TAG{uid[0]}", f"TAGD{uid[0]}"
        a.wait(vm="tag")
        a.e(f"v_readfirstlane_b32 s76, v{tmp}")
        a.e(f"v_readfirstlane_b32 s77, v{tmp+1}")
        a.e("s_nop 1")
        a.e("s_cmp_eq_u32 s76, 0")
        a.e(f"s_cbranch_scc1 {L}_S")
        a.e(f"{D}:")
        cold.e(f"{L}_S:")
        cold.e("s_mov_b32 s78, 0")
        cold.e(f"{L}:")
        cold.e(f"s_sleep {SLP}")
        cold.e(f"buffer_load_dwordx2 {vr(tmp,2)}, v{vz}, s[32:35], 0 offen sc1")
        cold.e("s_waitcnt vmcnt(0)")
        cold.e(f"v_readfirstlane_b32 s76, v{tmp}")
        cold.e(f"v_readfirstlane_b32 s77, v{tmp+1}")
        cold.e("s_nop 1")
        cold.e("s_cmp_lg_u32 s76, 0")
        cold.e(f"s_cbranch_scc1 {D}")
        spin_tail(L, D)

    def flag_store(soff, t):
        a.e(f"v_mov_b32 v{t}, s76")
        a.e(f"v_mov_b32 v{t+1}, s77")
        a.e(f"v_mov_b32 v{t+2}, 0")
        a.e("s_mov_b64 exec, 1")
        a.vmem(f"buffer_store_dwordx2 {vr(t,2)}, v{t+2}, s[28:31], {soff} offen sc1", "fl")
        a.e("s_mov_b64 exec, -1")

    Q, C, O = 8, 16, 48
    SB = [80, 96, 112]
    KV, NBP = 128, 4
    NQ = 2
    NKG = opt.get("nkg", 32)
    NKT = {"G": NKG, "L": 64 - NKG}
    PKB = 232
    NF = opt.get("nf", 1)

    def ones_init(b, src):
        return [f"v_mov_b32 v{KV+b*12+4+r}, v{src}" for r in range(8)]

    def wo_addr():
        a.e("v_bfe_u32 v232, v1, 2, 2")
        a.e("v_lshl_add_u32 v233, v4, 2, v232")
        a.e("v_lshlrev_b32 v233, 7, v233")
        a.e("v_and_b32 v234, 1, v1")
        a.e("v_lshlrev_b32 v234, 2, v234")
        a.e("v_bfe_u32 v235, v1, 1, 1")
        a.e("v_add_u32 v234, v234, v235")
        a.e("v_bfe_u32 v235, v1, 4, 1")
        a.e("v_lshl_add_u32 v234, v235, 1, v234")
        a.e("s_and_b32 s47, s65, 1")
        a.e("s_lshl_b32 s47, s47, 1")
        a.e("v_xor_b32 v234, s47, v234")
        a.e("v_and_b32 v235, 1, v234")
        a.e("v_lshl_add_u32 v233, v235, 3, v233")
        a.e("v_lshrrev_b32 v234, 1, v234")
        a.e("v_bfe_u32 v235, v1, 3, 1")
        a.e("s_lshr_b32 s47, s65, 1")
        a.e("v_xor_b32 v235, s47, v235")
        a.e("v_lshl_add_u32 v234, v235, 2, v234")
        a.e("v_lshl_add_u32 v233, v234, 4, v233")
        a.e("s_lshl_b32 s47, s65, 14")
        a.e("v_add_u32 v232, s47, v233")
        a.e("v_xor_b32 v233, 64, v232")
        a.e(f"v_add_u32 v234, {WOB}, v232")
        a.e(f"v_add_u32 v235, {WOB}, v233")
        a.e("v_and_b32 v224, 3, v1")
        a.e(f"v_lshlrev_b32 v224, {FSH}, v224")

    def attn_vsetup(role):
        a.e("v_cmp_gt_u32 vcc, 32, v1")
        a.e("v_mov_b32 v92, 0x3f80")
        a.e("v_mov_b32 v227, v30")
        a.e("v_cndmask_b32 v80, 0, v92, vcc")
        for r in (81, 82, 83, 85, 86, 87, 89, 90, 91):
            a.e(f"v_mov_b32 v{r}, 0")
        a.e("v_lshlrev_b32 v225, 3, v5")
        a.e("v_lshrrev_b32 v226, 3, v1")
        a.e("v_lshlrev_b32 v226, 10, v226")
        a.e("v_bfe_u32 v92, v1, 4, 1")
        a.e("v_lshlrev_b32 v92, 2, v92")
        a.e("v_and_b32 v93, 7, v1")
        a.e("v_xor_b32 v92, v92, v93")
        a.e("v_lshl_add_u32 v226, v92, 4, v226")
        if role == "G":
            a.e(f"v_mov_b32 v224, {CTR}")
        else:
            wo_addr()
            a.e("s_mul_i32 s47, s44, 5120")
            a.e(f"s_add_u32 s47, s47, {CMB}")
            a.e("v_add_u32 v240, s47, v2")
            a.e("v_lshlrev_b32 v241, 3, v1")
            a.e("v_add_u32 v241, s47, v241")
            a.e("s_lshl_b32 s47, s44, 2")
            a.e(f"s_add_u32 s47, s47, {CTR+16}")
            a.e("v_mov_b32 v242, s47")
            a.e(f"v_mov_b32 v246, {CTR}")
            a.e("v_mov_b32 v247, 1")

    def wo_issue():
        if opt.get("xwo"):
            return
        a.e("s_add_u32 m0, s58, s56")
        a.e("s_lshl_b32 s57, s56, 3")
        a.e("s_add_u32 s57, s57, s59")
        a.vmem("buffer_load_dwordx4 v226, s[20:23], s57 offen lds", "wo")
        a.e("s_add_u32 s56, s56, 1024")

    def wo_touch(half, dst):
        a.e("s_lshr_b32 s57, s2, 3")
        a.e("s_lshl_b32 s57, s57, 2")
        a.e("s_add_u32 s57, s57, s44")
        a.e("s_lshl_b32 s57, s57, 12")
        a.e(f"v_lshlrev_b32 v{dst}, 3, v3")
        if half is not None:
            a.e(f"v_and_b32 v{dst}, 0x7ff, v{dst}")
        a.vmem(f"buffer_load_dword v{dst}, v{dst}, s[20:23], s57 offen offset:{(half or 0)*2048}", "wt")

    def kb(kt):
        return KV + (kt % (2 * NBP)) * 12

    def load_pair(p, asm=None):
        t_ = asm or a
        for t in range(2):
            t_.vmem(f"buffer_load_dwordx4 {vr(kb(2*p+t))}, v6, s[28:31], s54 offen offset:{t*2048} sc1", f"k{2*p+t}")
        t_.e("s_mov_b64 exec, s[60:61]")
        for t in range(2):
            for m in range(2):
                t_.vmem(f"buffer_load_dwordx4 {vr(kb(2*p+t)+4+4*m)}, v3, s[28:31], s54 offen offset:{t*2048+1024+m*512} sc1", f"v{2*p+t}")
        t_.e("s_mov_b64 exec, -1")
        t_.e("s_add_u32 s54, s54, 4096")

    def first_loads():
        a.e("s_mov_b32 s54, s52")
        for p in range(NF):
            load_pair(p)

    def lds_check(vaddr, tmp, target, tag):
        uid[0] += 1
        L, D = f"LC{uid[0]}", f"LCD{uid[0]}"
        a.wait(lg=tag)
        a.e(f"v_cmp_gt_u32 vcc, {target}, v{tmp}")
        a.e(f"s_cbranch_vccnz {L}_S")
        a.e(f"{D}:")
        cold.e(f"{L}_S:")
        cold.e("s_mov_b32 s78, 0")
        cold.e(f"{L}:")
        cold.e(f"s_sleep {SLP}")
        cold.e(f"ds_read_b32 v{tmp}, v{vaddr}")
        cold.e("s_waitcnt lgkmcnt(0)")
        cold.e(f"v_cmp_gt_u32 vcc, {target}, v{tmp}")
        cold.e(f"s_cbranch_vccz {D}")
        cold.e("s_add_u32 s78, s78, 1")
        cold.e(f"s_cmp_lt_u32 s78, {SPIN*16}")
        cold.e(f"s_cbranch_scc1 {L}")
        cold.e(f"s_branch {D}")

    def attn_main(R, hooks):
        nkt = NKT[R]
        a.wait(vm="k0", lg="q")
        for j in range(NQ):
            a.e(f"v_mfma_f32_32x32x16_bf16 {vr(O+16*j,16)}, {vr(kb(0))}, {vr(Q+4*j)}, 0")
        for p in range(NF, NBP - 1):
            load_pair(p)
        if NF == NBP - 1:
            a.nop(11)
        elif NF == NBP - 2:
            a.nop(2)
        for j in range(NQ):
            o = O + 16 * j
            t = 92 + j
            a.e(f"v_max3_f32 v{t}, v{o}, v{o+1}, v{o+2}")
            for r in range(3, 15, 2):
                a.e(f"v_max3_f32 v{t}, v{t}, v{o+r}, v{o+r+1}")
            a.e(f"v_max_f32 v{t}, v{t}, v{o+15}")
            a.e(f"v_add_f32 v{t}, {f32bits(40.0):#x}, v{t}")
            bb = 84 + 4 * j
            a.e(f"v_cvt_pk_bf16_f32 v{bb}, -v{t}, 0")
            a.nop(2)
            a.e(f"v_mfma_f32_32x32x16_bf16 {vr(C+16*j,16)}, v[80:83], {vr(bb)}, 0")
        a.e(f"A_MAIN_{R}:")
        for r in range(32):
            a.e(f"v_mov_b32 v{O+r}, 0")
        tiles = [(kt, j) for kt in range(nkt) for j in range(NQ)]

        def qk(n):
            kt, j = tiles[n]
            return f"v_mfma_f32_32x32x16_bf16 {vr(SB[n%3],16)}, {vr(kb(kt))}, {vr(Q+4*j)}, {vr(C+16*j,16)}"

        def pv(n, m):
            kt, j = tiles[n]
            return f"v_smfmac_f32_32x32x32_bf16 {vr(O+16*j,16)}, {vr(kb(kt)+4+4*m)}, {vr(SB[n%3]+8*m,8)}, v7"

        pf.stamp(10)
        a.e(qk(0))
        a.e(qk(1))
        a.nop(11)
        NT = len(tiles)
        P1, P2, P3 = opt.get("p1", 3), opt.get("p2", 8), opt.get("p3", 13)
        for n in range(NT):
            kt, j = tiles[n]
            s = SB[n % 3]
            if n == 32:
                pf.stamp(11)
            if R == "L" and n in (8, 16, 48):
                pf.stamp({8: 6, 16: 7, 48: 8}[n])
            for i in range(16):
                if i == P1 and n > 0:
                    a.e(pv(n - 1, 1))
                if i == P2 and n + 2 < NT:
                    if tiles[n + 2][1] == 0:
                        kt2 = tiles[n + 2][0]
                        a.wait(vm=f"v{kt2+1}" if (kt2 % 2 == 0 and opt.get("onewait", 0) and n >= 2) else f"k{kt2}")
                    a.e(qk(n + 2))
                if i == P3:
                    if j == 0:
                        a.wait(vm=f"v{kt}")
                    a.e(pv(n, 0))
                if opt.get("spread", 0) and n // 4 + NBP - 1 < nkt // 2:
                    p_ = n // 4 + NBP - 1
                    if i == 6 and n % 4 == 0:
                        for t in range(2):
                            a.vmem(f"buffer_load_dwordx4 {vr(kb(2*p_+t))}, v6, s[28:31], s54 offen offset:{t*2048} sc1", f"k{2*p_+t}")
                    if i == 10 and n % 4 == 0:
                        a.e("s_mov_b64 exec, s[60:61]")
                        for t in range(2):
                            for m in range(2):
                                a.vmem(f"buffer_load_dwordx4 {vr(kb(2*p_+t)+4+4*m)}, v3, s[28:31], s54 offen offset:{t*2048+1024+m*512} sc1", f"v{2*p_+t}")
                        a.e("s_mov_b64 exec, -1")
                        a.e("s_add_u32 s54, s54, 4096")
                if i == 6:
                    if n % 4 == 0 and n // 4 + NBP - 1 < nkt // 2 and not opt.get("spread", 0) and not (opt.get("xld") and n > 0):
                        load_pair(n // 4 + NBP - 1)
                    for h_ in hooks.get(n, []):
                        h_()
                a.e(f"v_exp_f32 v{s+i}, v{s+i}")
        T0 = SB[(NT + 1) % 3]
        a.e(f"v_mov_b32 v{T0}, {f32bits(2.0**100):#x}")
        a.e(f"v_mov_b32 v{T0+1}, 0")
        a.e(pv(NT - 1, 1))
        a.e(f"v_mov_b32 v{T0+2}, {f32bits(2.0**-70):#x}")
        for r in range(8):
            a.e(f"v_fma_f32 v{T0+1}, v{O+r}, 0, v{T0+1}")
        a.e(f"v_cmp_lt_f32 s[96:97], v{O+8}, v{T0}")
        a.e(f"v_cmp_gt_f32 vcc, v{O+8}, v{T0+2}")
        a.e(f"v_mov_b32 v{O+9}, v{C}")
        a.e("s_and_b64 s[96:97], s[96:97], vcc")
        pf.stamp(12)
        for r in range(8):
            a.e(f"v_fma_f32 v{T0+1}, v{O+16+r}, 0, v{T0+1}")
        a.e(f"v_cmp_lt_f32 s[50:51], v{O+24}, v{T0}")
        a.e(f"v_cmp_gt_f32 vcc, v{O+24}, v{T0+2}")
        a.e(f"v_mov_b32 v{O+25}, v{C+16}")
        a.e("s_and_b64 s[50:51], s[50:51], vcc")
        a.e(f"v_cmp_o_f32 vcc, v{T0+1}, v{T0+1}")
        a.e("s_and_b64 s[96:97], s[96:97], s[50:51]")
        a.e("s_and_b64 s[96:97], s[96:97], vcc")
        a.e("s_or_b64 s[96:97], s[96:97], s[94:95]")
        a.e("s_cmp_eq_u64 s[96:97], -1")
        a.e(f"s_cbranch_scc0 A_FBS_{R}")
        c_ = cold
        c_.e(f"A_FBS_{R}:")
        c_.e("s_waitcnt vmcnt(0) lgkmcnt(0)")
        c_.e(f"v_mov_b32 v80, {NEGBIG:#x}")
        c_.e(f"v_mov_b32 v81, {NEGBIG:#x}")
        c_.e("s_mov_b32 s54, s52")
        c_.e("s_mov_b32 s50, 0")
        c_.e(f"A_FB_{R}:")
        c_.e(f"buffer_load_dwordx4 {vr(kb(0))}, v6, s[28:31], s54 offen sc1")
        c_.e("s_waitcnt vmcnt(0)")
        for j in range(NQ):
            c_.e(f"v_mfma_f32_32x32x16_bf16 {vr(O+16*j,16)}, {vr(kb(0))}, {vr(Q+4*j)}, 0")
        c_.nop(12)
        for j in range(NQ):
            o = O + 16 * j
            for r in range(0, 16, 2):
                c_.e(f"v_max3_f32 v{80+j}, v{80+j}, v{o+r}, v{o+r+1}")
        c_.e("s_add_u32 s54, s54, 2048")
        c_.e("s_add_u32 s50, s50, 1")
        c_.e(f"s_cmp_lt_u32 s50, {nkt}")
        c_.e(f"s_cbranch_scc1 A_FB_{R}")
        for j in range(NQ):
            c_.e(f"v_mov_b32 v82, v{80+j}")
            c_.nop(2)
            c_.e(f"v_permlane32_swap_b32 v82, v{80+j}")
            c_.nop(2)
            c_.e(f"v_max_f32 v82, v82, v{80+j}")
            for r in range(16):
                c_.e(f"v_sub_f32 v{C+16*j+r}, 0, v82")
        for b in range(2 * NBP):
            for t in ones_init(b, 227):
                c_.e(t)
        c_.e("s_mov_b64 s[94:95], -1")
        c_.e("s_mov_b32 s54, s52")
        c_.e("s_mov_b32 s56, 0")
        c_.e("s_mov_b32 s26, 0")
        for p in range(NBP - 1):
            load_pair(p, c_)
        c_.e("s_waitcnt vmcnt(0)")
        c_.e(f"s_branch A_MAIN_{R}")

    a.e("s_cmp_ge_u32 s2, 256")
    a.e("s_cbranch_scc1 K_END")
    pf.stamp(0, True)
    pf.stamp(1)
    a.e("s_load_dwordx4 s[4:7], s[0:1], 0")
    a.e("s_load_dwordx4 s[36:39], s[0:1], 64")
    a.e("s_load_dwordx4 s[12:15], s[0:1], 32")
    a.e("s_load_dwordx4 s[16:19], s[0:1], 48")
    a.e("s_load_dwordx2 s[8:9], s[0:1], 16")
    a.e("s_memrealtime s[76:77]")
    a.e("s_and_b32 s47, s2, 7")
    a.e("s_lshr_b32 s48, s2, 3")
    a.e("s_and_b32 s40, s47, 3")
    a.e("s_lshl_b32 s40, s40, 3")
    a.e("s_and_b32 s80, s48, 7")
    a.e("s_add_u32 s40, s40, s80")
    a.e("s_lshr_b32 s41, s47, 2")
    a.e("s_lshl_b32 s41, s41, 2")
    a.e("s_lshr_b32 s81, s48, 3")
    a.e("s_add_u32 s41, s41, s81")
    a.e("s_lshr_b32 s42, s48, 2")
    a.e("s_lshl_b32 s43, s47, 2")
    a.e("s_and_b32 s51, s48, 3")
    a.e("s_add_u32 s43, s43, s51")
    a.e("v_lshrrev_b32 v2, 6, v0")
    a.e("v_and_b32 v1, 63, v0")
    a.e("v_readfirstlane_b32 s63, v2")
    a.e("v_lshlrev_b32 v2, 4, v1")
    a.e("v_lshrrev_b32 v4, 5, v1")
    a.e("v_and_b32 v5, 31, v1")
    a.e("v_mov_b32 v31, 0")
    a.e("s_and_b32 s44, s63, 3")
    a.e("s_cmp_lt_u32 s63, 4")
    a.e("s_cbranch_scc1 GEMM")

    def attn_ssetup(role):
        a.e("v_and_b32 v3, 15, v1")
        a.e("v_lshlrev_b32 v3, 4, v3")
        a.e("v_lshl_add_u32 v3, v4, 8, v3")
        a.e("v_and_b32 v6, 0x33, v1")
        a.e("v_bfe_u32 v7, v1, 2, 1")
        a.e("v_lshl_add_u32 v6, v7, 3, v6")
        a.e("v_bfe_u32 v7, v1, 3, 1")
        a.e("v_lshl_add_u32 v6, v7, 2, v6")
        a.e("v_lshlrev_b32 v6, 4, v6")
        k0 = 0 if role == "G" else NKG
        a.e("s_lshl_b32 s45, s40, 1")
        a.e("s_lshl_b32 s62, s41, 2")
        a.e("s_add_u32 s62, s62, s44")
        a.e(f"v_min_u32 v17, {NKT[role]-1}, v1")
        a.e(f"v_lshlrev_b32 v17, {FSH}, v17")
        a.e("s_lshr_b32 s48, s62, 1")
        a.e(f"s_lshl_b32 s48, s48, {6+FSH}")
        a.e(f"s_add_u32 s48, s48, {F_A + (k0 << FSH):#x}")
        a.e("s_lshl_b32 s52, s62, 17")
        a.e(f"s_add_u32 s52, s52, {KVA + k0*2048:#x}")
        a.e("s_lshl_b32 s49, s44, 11")
        a.e(f"s_add_u32 s49, s49, {QX}")
        a.e("s_mov_b32 s60, 0x0000ffff")
        a.e("s_mov_b32 s61, 0x0000ffff")
        a.e("v_and_b32 v30, 27, v1")
        a.e("v_cmp_eq_u32 vcc, 16, v30")
        a.e("v_mov_b32 v7, 0x3f803f80")
        a.e("s_lshl_b32 s58, s44, 14")
        a.e("v_cndmask_b32 v30, 0, v7, vcc")
        a.e("v_mov_b32 v7, 0xdddddddd")
        a.e(f"s_add_u32 s58, s58, {WOB if role == 'L' else WOA}")
        a.e("s_lshl_b32 s59, s44, 17")
        a.e("s_lshl_b32 s51, s42, 7")
        a.e("s_add_u32 s59, s59, s51")
        a.e("s_mov_b32 s56, 0")
        a.e("s_and_b32 s64, s63, 1")
        a.e("s_lshr_b32 s65, s63, 1")
        a.e("s_lshl_b32 s66, s43, 1")
        a.e("s_add_u32 s66, s66, s64")
        a.e("s_lshl_b32 s74, s45, 8")
        a.e(f"s_add_u32 s74, s74, {GT:#x}")
        a.e("s_lshl_b32 s67, s66, 6")
        a.e("s_lshl_b32 s68, s65, 3")
        a.e("s_add_u32 s67, s67, s68")
        a.e("s_lshl_b32 s67, s67, 10")
        a.e(f"s_add_u32 s67, s67, {OF:#x}")
        a.e("s_add_u32 s70, s67, 4096")
        a.e("s_add_u32 s68, s67, 0x8000")
        a.e("s_add_u32 s71, s68, 4096")
        a.e("s_lshl_b32 s69, s66, 4")
        a.e("s_lshl_b32 s47, s65, 2")
        a.e("s_add_u32 s69, s69, s47")
        a.e(f"s_lshl_b32 s69, s69, {FSH}")
        a.e(f"s_add_u32 s69, s69, {F_OB:#x}")
        a.e("s_lshl_b32 s73, s45, 6")
        a.e("s_add_u32 s73, s73, s62")
        a.e("s_lshl_b32 s73, s73, 10")
        a.e(f"s_add_u32 s73, s73, {OF:#x}")
        a.e("s_add_u32 s53, s73, 0x10000")
        a.e("s_lshl_b32 s72, s66, 15")
        a.e("s_add_u32 s72, s72, s51")
        a.e("s_lshr_b32 s47, s65, 1")
        a.e("s_lshl_b32 s47, s47, 6")
        a.e("s_add_u32 s72, s72, s47")
        a.e("s_and_b32 s47, s65, 1")
        a.e("s_lshl_b32 s47, s47, 4")
        a.e("s_add_u32 s72, s72, s47")

    def dma_addr(xv, wv):
        a.e("v_lshrrev_b32 v19, 3, v1")
        a.e("v_and_b32 v15, 7, v1")
        a.e("v_lshrrev_b32 v16, 4, v1")
        a.e("s_lshl_b32 s50, s44, 4")
        if xv is not None:
            a.e("s_lshl_b32 s49, s40, 6")
            a.e("s_add_u32 s49, s49, s50")
            a.e("v_add_u32 v12, s49, v19")
            a.e("v_lshlrev_b32 v12, 10, v12")
            a.e("v_xor_b32 v13, v15, v16")
            a.e("v_xor_b32 v14, 4, v13")
            a.e(f"v_lshl_add_u32 v{xv}, v13, 4, v12")
            a.e(f"v_lshl_add_u32 v{xv+1}, v14, 4, v12")
            a.e(f"v_add_u32 v{xv+1}, 0x2000, v{xv+1}")
        a.e("v_add_u32 v12, s50, v19")
        a.e("v_mul_u32_u24 v12, 0xc00, v12")
        a.e("v_and_b32 v13, 1, v16")
        a.e("v_lshlrev_b32 v13, 2, v13")
        a.e("v_xor_b32 v13, v15, v13")
        a.e(f"v_lshl_add_u32 v{wv}, v13, 4, v12")
        a.e("s_lshl_b32 s50, s41, 7")
        a.e(f"v_add_u32 v{wv}, s50, v{wv}")
        a.e(f"v_add_u32 v{wv+1}, 0x6000, v{wv}")

    def w_items(base, segs, wv, sd, so, m0b):
        L = []
        for k, seg in enumerate(segs):
            for i in range(2):
                L.append((f"s_add_u32 m0, s{m0b}, {base + k*8192 + i*1024 - seg*1024:#x}",
                          f"buffer_load_dwordx4 v{wv+i}, s[{sd}:{sd+3}], s{so} offen offset:{seg*1024} lds"))
        return L

    def w_adv(so):
        a.e(f"s_add_u32 s{so}, s{so}, {WROW:#x}")
        a.e(f"s_cmp_eq_u32 s{so}, {8*WROW:#x}")
        a.e(f"s_cselect_b32 s{so}, 0, s{so}")

    def rot_chunk(dst):
        a.e("s_lshl_b32 s81, s81, 1")
        a.e(f"s_add_u32 s{dst}, s80, s81")
        a.e(f"s_and_b32 s{dst}, s{dst}, {opt.get('rotmask', 7)}")

    def q_read():
        a.e("v_add_u32 v18, s49, v2")
        for j in range(NQ):
            a.ds(f"ds_read_b128 {vr(Q+4*j)}, v18 offset:{j*1024}", "q")

    def sb_arrive(vc, v1_, off=0):
        a.e("s_mov_b64 exec, 1")
        a.ds(f"ds_add_u32 v{vc}, v{v1_} offset:{off}", "sb")
        a.e("s_mov_b64 exec, -1")

    a.c("BEGIN loader")
    rot_chunk(82)
    dma_addr(8, 10)
    a.e("s_lshl_b32 s83, s44, 11")
    a.e("s_lshl_b32 s80, s82, 7")
    a.e(f"s_mul_i32 s81, s82, {WROW:#x}")
    a.e("s_mov_b32 s82, s81")
    a.e("s_mov_b32 s11, s81")
    a.e("s_waitcnt lgkmcnt(0)")
    srd(a, 20, 4, 2048 * 512 * 2)
    srd(a, 24, 6, 512 * 1536 * 2)

    def emit_items(items, tag):
        for m, l in items:
            a.e(m)
            a.e("s_nop 0")
            a.vmem(l, tag)

    def issue_a(c):
        base = (c % 3) * SLOT
        for i in range(2):
            a.e(f"s_add_u32 m0, s83, {base + i*1024:#x}")
            a.e("s_nop 0")
            a.vmem(f"buffer_load_dwordx4 v{8+i}, s[20:23], s80 offen lds", f"a{c}")
        a.e("s_add_u32 s80, s80, 128")
        a.e("s_and_b32 s80, s80, 0x3ff")
        emit_items(w_items(base + 8192, (1, 2), 10, 24, 81, 83), f"a{c}")
        w_adv(81)

    def issue_wb(c, wv=10):
        emit_items(w_items(WBR[c % 5], (0, 1, 2), wv, 84, 11, 83), f"b{c}")
        w_adv(11)

    def issue_q(c):
        emit_items(w_items(WQ + c * 8192, (0,), 10, 24, 82, 83), "wq")
        w_adv(82)

    issue_a(0)
    srd(a, 28, 38, WS_BYTES)
    srd(a, 32, 36, 256)
    srd(a, 84, 12, 512 * 1536 * 2)
    srd(a, 88, 16, 1024)
    a.e("s_lshl_b32 s47, s2, 3")
    a.e("s_add_u32 s47, s47, s63")
    a.e("s_cmp_eq_u32 s47, 4")
    a.e("s_cbranch_scc1 TAGPUB")
    a.e("TAGPUBD:")
    cold.e("TAGPUB:")
    cold.e("s_or_b32 s76, s76, 1")
    cold.e("v_mov_b32 v28, s76")
    cold.e("v_mov_b32 v29, s77")
    cold.e("s_mov_b64 exec, 1")
    cold.e("buffer_store_dwordx2 v[28:29], v31, s[32:35], 0 offen sc1")
    cold.e("s_mov_b64 exec, -1")
    cold.e("s_branch TAGPUBD")
    issue_a(1)
    Q0AT = opt.get("q0at", -1)
    if Q0AT == -1:
        issue_q(0)
    WB0AT = opt.get("wb0at", 0)
    if WB0AT == -1:
        issue_wb(0)
    a.e("s_lshl_b32 s92, s40, 6")
    a.e("s_lshl_b32 s47, s41, 3")
    a.e("s_add_u32 s92, s92, s47")
    a.e("s_lshl_b32 s47, s44, 1")
    a.e("s_add_u32 s92, s92, s47")
    a.e("s_lshl_b32 s10, s92, 3")
    a.e(f"s_add_u32 s10, s10, {GT:#x}")
    a.e("s_lshl_b32 s92, s92, 10")
    a.vmem("buffer_load_dwordx4 v[40:43], v2, s[88:91], 0 offen", "g")
    attn_ssetup("L")
    attn_vsetup("L")
    for b in range(2 * NBP):
        for t in ones_init(b, 30):
            a.e(t)

    def gate_compute():
        A = a.e
        for d in range(4):
            A(f"v_lshlrev_b32 v{44+2*d}, 16, v{40+d}")
            A(f"v_and_b32 v{45+2*d}, 0xffff0000, v{40+d}")
        for row in range(2):
            xb = 32 + row * 4
            acc = 56 + row
            for d in range(4):
                A(f"v_lshlrev_b32 v52, 16, v{xb+d}")
                A(f"v_and_b32 v53, 0xffff0000, v{xb+d}")
                A(f"v_mul_f32 v52, v52, v{44+2*d}")
                A(f"v_mul_f32 v53, v53, v{45+2*d}")
                A("v_cvt_pk_bf16_f32 v54, v52, v53")
                A("v_lshlrev_b32 v52, 16, v54")
                A("v_and_b32 v53, 0xffff0000, v54")
                if d == 0:
                    A(f"v_add_f32 v{acc}, v52, v53")
                else:
                    A(f"v_add_f32 v{acc}, v{acc}, v52")
                    A(f"v_add_f32 v{acc}, v{acc}, v53")

    def gate_compute2():
        A = a.e
        for mod in ("quad_perm:[1,0,3,2]", "quad_perm:[2,3,0,1]", "row_half_mirror", "row_mirror"):
            A("s_nop 1")
            A(f"v_add_f32_dpp v56, v56, v56 {mod} row_mask:0xf bank_mask:0xf")
            A(f"v_add_f32_dpp v57, v57, v57 {mod} row_mask:0xf bank_mask:0xf")
        A("s_nop 1")
        for row in range(2):
            for q in range(4):
                A(f"v_readlane_b32 s{88+row*4+q}, v{56+row}, {q*16}")
        A("s_nop 1")
        A("v_cmp_eq_u32 vcc, 0, v1")
        A("v_mov_b32 v52, s88")
        A("v_add_f32 v52, s89, v52")
        A("v_add_f32 v52, s90, v52")
        A("v_add_f32 v52, s91, v52")
        A("v_mov_b32 v53, s92")
        A("v_add_f32 v53, s93, v53")
        A("v_add_f32 v53, s94, v53")
        A("v_add_f32 v53, s95, v53")
        A("v_cndmask_b32 v52, v53, v52, vcc")
        A("v_cvt_pk_bf16_f32 v52, v52, v52")
        A("v_and_b32 v52, 0xffff0000, v52")
        A(f"v_mul_f32 v52, {f32bits(-math.log2(math.e)):#x}, v52")
        A("v_exp_f32 v52, v52")
        A("s_nop 0")
        A("v_add_f32 v52, 1.0, v52")
        A("v_rcp_f32 v52, v52")
        A("s_nop 0")
        A("v_cvt_pk_bf16_f32 v52, v52, v52")
        A("v_and_b32 v52, 0xffff0000, v52")
        A("v_sub_f32 v53, 1.0, v52")
        A("v_cvt_pk_bf16_f32 v236, v53, v52")
        A("v_lshlrev_b32 v238, 3, v1")
        A("s_mov_b64 s[94:95], 0")

    def gate_publish():
        a.e("v_mov_b32 v237, s76")
        a.e("s_mov_b64 exec, 3")
        a.vmem("buffer_store_dwordx2 v[236:237], v238, s[28:31], s10 offen sc1", "gs")
        a.e("s_mov_b64 exec, -1")

    for c in range(8):
        a.wait(vm=f"a{c}")
        a.e("s_barrier")
        if c in (0, 4):
            pf.stamp(2 if c == 0 else 3)
        SL2 = opt.get("sl2", 0)
        if SL2 and c % 2 == 0 and c // 2 < SL2:
            if c == 0:
                a.e("s_lshr_b32 s47, s2, 3")
                a.e("s_lshl_b32 s47, s47, 2")
                a.e("s_add_u32 s47, s47, s44")
                a.e("s_mul_i32 s47, s47, 12288")
                a.e("s_lshr_b32 s50, s41, 2")
                a.e("s_lshl_b32 s50, s50, 9")
                a.e("s_add_u32 s47, s47, s50")
                a.e("s_add_u32 s96, s12, s47")
                a.e("s_addc_u32 s97, s13, 0")
            else:
                a.e("s_waitcnt lgkmcnt(0)") if opt.get("sl2w", 0) else None
            for t in range(14):
                q_ = (c // 2) * 14 + t
                a.e(f"s_load_dword s93, s[96:97], {(q_ // 8) * 1024 + (q_ % 8) * 64}")
        SW = opt.get("swarm", 0)
        if SW and c in (1, 5) + ((3,) if SW == 64 else ()):
            a.e("s_lshl_b32 s47, s2, 2")
            a.e("s_add_u32 s47, s47, s44")
            if c in (1, 3):
                a.e("s_mul_i32 s47, s47, 1536")
                a.e("s_add_u32 s96, s12, s47")
                a.e("s_addc_u32 s97, s13, 0")
                for t in range(12):
                    a.e(f"s_load_dword s93, s[96:97], {t*128 + (64 if c == 3 else 0)}")
            else:
                a.e("s_lshl_b32 s47, s47, 9")
                for base in (8, 14):
                    a.e(f"s_add_u32 s96, s{base}, s47")
                    a.e(f"s_addc_u32 s97, s{base+1}, 0")
                    for t in range(4 if SW != 64 else 7):
                        a.e(f"s_load_dword s93, s[96:97], {t*(128 if SW != 64 else 64)}")
        if c == 2:
            a.vmem("buffer_load_dwordx4 v[32:35], v2, s[20:23], s92 offen", "g")
            a.vmem("buffer_load_dwordx4 v[36:39], v2, s[20:23], s92 offen offset:1024", "g")
        if c == WB0AT and opt.get("wbfirst", 0):
            issue_wb(0)
        if c + 2 < 8:
            issue_a(c + 2)
        if c == WB0AT and not opt.get("wbfirst", 0):
            issue_wb(0)
        if c == Q0AT:
            issue_q(0)
        if c == 5:
            for q_ in range(1, 3):
                issue_q(q_)
        if c == 6:
            for q_ in range(3, 6):
                issue_q(q_)
        if c == 7:
            for q_ in range(6, 8):
                issue_q(q_)
    a.wait(vm="wq")
    a.e("s_barrier")
    pf.stamp(4)
    a.e("s_waitcnt lgkmcnt(0)")
    tag_issue(58, 31)
    issue_wb(1)
    if opt.get("wb2l", 1):
        issue_wb(2)
    gate_compute()
    gate_compute2()
    tag_check(58, 31)
    a.e("v_mov_b32 v20, v10")
    a.e("v_mov_b32 v21, v11")
    a.e("s_barrier")
    pf.stamp(5)
    q_read()
    issue_wb(3, 20)
    a.wait(vm="b1")
    a.e("s_barrier")
    issue_wb(4, 20)
    a.wait(vm="b2")
    a.e("s_barrier")
    issue_wb(5, 20)
    a.wait(vm="b3")
    a.e("s_barrier")
    issue_wb(6, 20)
    a.wait(vm="b4")
    a.e("s_barrier")
    issue_wb(7, 20)
    a.wait(lg="q")
    poll_issue(17, "s48", 18, "pa")
    a.wait(vm="b5")
    a.e("s_barrier")
    a.wait(vm="b7")
    a.e("s_barrier")
    a.e("s_setprio 3")
    a.wait(vm="pa")
    a.e("v_cmp_ne_u64 vcc, s[76:77], v[18:19]")
    a.e("s_cbranch_vccz LPOLLD")
    a.c("BEGIN slow")
    poll_inline(17, "s48", 18, sleep=opt.get("psleep", 0))
    a.c("END slow")
    a.e("LPOLLD:")
    pf.stamp(9)
    first_loads()
    NTL = 2 * NKT["L"]
    GV = 128
    OBF = 160
    assert (NKT["L"] % 8) == 0

    def l_at11():
        gate_publish()

    def l_polls():
        a.vmem("buffer_load_dwordx2 v[228:229], v225, s[28:31], s74 offen sc1", "gl")
        a.vmem("buffer_load_dwordx2 v[230:231], v225, s[28:31], s74 offen offset:256 sc1", "gl")
        poll_issue(224, "s69", 244, "pb")

    def l_pf_issue():
        a.ds("ds_read_b32 v243, v242", "pf")

    def l_pf_check():
        lds_check(242, 243, 1, "pf")
        for j in range(2):
            a.ds(f"ds_read_b64 {vr(GV+12*j+8,2)}, v241 offset:{j*2560+2048}", "r0")
        for j in range(2):
            a.ds(f"ds_read_b128 {vr(GV+12*j)}, v240 offset:{j*2560}", f"r{j+1}")
            a.ds(f"ds_read_b128 {vr(GV+12*j+4)}, v240 offset:{j*2560+1024}", f"r{j+1}")

    def ob_loads(asm):
        for t in range(8):
            asm.e(f"buffer_load_dwordx4 {vr(152+4*t)}, v2, s[28:31], s{68 if t < 4 else 71} offen offset:{(t&3)*1024} sc1")

    def l_ob_try():
        a.wait(vm="pb")
        assert a.vm == []
        a.e("v_cmp_ne_u64 vcc, s[76:77], v[244:245]")
        a.e("s_mov_b32 s55, 0")
        a.e("s_cbranch_vccnz LOB_SKIP")
        ob_loads(a)
        a.e("s_mov_b32 s55, 1")
        a.e("LOB_SKIP:")

    hooks = {11: [l_at11], NTL - opt.get("lp1", 8): [l_polls], NTL - opt.get("lp2", 4): [l_ob_try], NTL - 3: [l_pf_issue], NTL - 1: [l_pf_check],
             NTL - 10: [lambda: a.ds("ds_read_b32 v243, v246", "sc")], NTL - 7: [lambda: lds_check(246, 243, 8, "sc")]}
    if opt.get("saw", 1):
        n_, g_ = 0, 0
        pat = {1: (2, 1), 2: (3, 3), 3: (1, 1), 4: (2, 2)}[opt.get("saw", 1)]
        while n_ < opt.get("lsawend", 40):
            hooks.setdefault(n_, []).append(lambda v_=3 - g_ % 4: a.e(f"s_setprio {v_}"))
            n_ += pat[g_ % 2]
            g_ += 1
        hooks.setdefault(n_, []).append(lambda: a.e("s_setprio 0"))
    else:
        for k_, v_ in ((opt.get("l2", 20), 2), (opt.get("l1", 38), 1), (opt.get("l0", 46), 0)):
            hooks.setdefault(k_, []).append(lambda v_=v_: a.e(f"s_setprio {v_}"))
    hooks.setdefault(NTL - 2, []).append(lambda: a.e("s_setprio 3"))
    hooks.setdefault(13, []).append(lambda: a.ds("ds_read_b32 v243, v246", "s5"))
    hooks.setdefault(15, []).append(lambda: lds_check(246, 243, 4, "s5"))
    WT = opt.get("wt", 0)
    if WT == 1:
        hooks.setdefault(5, []).append(lambda: wo_touch(None, 244))
    if WT == 2:
        hooks.setdefault(3, []).append(lambda: wo_touch(0, 244))
        hooks.setdefault(9, []).append(lambda: wo_touch(1, 245))
    wo_at = [n for n in range(17, NTL - 12) if n % 2 == 1]
    step_ = len(wo_at) / 16.0
    for k_ in range(16):
        hooks.setdefault(wo_at[int(k_ * step_)], []).append(wo_issue)
    srd(a, 20, 14, 512 * 512 * 2)
    attn_main("L", hooks)
    a.wait(vm="gl")
    a.e("v_cmp_ne_u32 vcc, s76, v229")
    a.e("v_cmp_ne_u32 s[96:97], s76, v231")
    a.wait(lg="r0") or a.e("s_nop 0")
    a.e("s_or_b64 s[96:97], s[96:97], vcc")
    a.e("s_cbranch_scc1 LGATE_S")
    a.e("LGATE_D:")
    cold.e("LGATE_S:")
    cold.e("s_mov_b32 s78, 0")
    cold.e("LGATE:")
    cold.e("buffer_load_dwordx2 v[228:229], v225, s[28:31], s74 offen sc1")
    cold.e("buffer_load_dwordx2 v[230:231], v225, s[28:31], s74 offen offset:256 sc1")
    cold.e("s_waitcnt vmcnt(0)")
    cold.e("v_cmp_ne_u32 vcc, s76, v229")
    cold.e("v_cmp_ne_u32 s[96:97], s76, v231")
    cold.e("s_nop 1")
    cold.e("s_or_b64 s[96:97], s[96:97], vcc")
    cold.e("s_cbranch_scc0 LGATE_D")
    spin_tail("LGATE", "LGATE_D")
    for j in range(2):
        g_, k_, t = GV + 12 * j, O + 16 * j, 16 + 4 * j
        a.e(f"v_log_f32 v{t+1}, v{g_+8}")
        a.e(f"v_log_f32 v{t}, v{k_+8}")
    for j in range(2):
        g_, k_, t = GV + 12 * j, O + 16 * j, 16 + 4 * j
        a.e(f"v_sub_f32 v{t+1}, v{t+1}, v{g_+9}")
        a.e(f"v_sub_f32 v{t}, v{t}, v{k_+9}")
    for j in range(2):
        g_, k_, t = GV + 12 * j, O + 16 * j, 16 + 4 * j
        a.e(f"v_max_f32 v{t}, v{t}, v{t+1}")
        a.e(f"v_sub_f32 v{t+1}, -v{g_+9}, v{t}")
        a.e(f"v_sub_f32 v{t}, -v{k_+9}, v{t}")
    for j in range(2):
        t = 16 + 4 * j
        a.e(f"v_exp_f32 v{t+1}, v{t+1}")
        a.e(f"v_exp_f32 v{t}, v{t}")
    for j in range(2):
        g_, k_, t = GV + 12 * j, O + 16 * j, 16 + 4 * j
        a.e(f"v_and_b32 v{t+3}, 0xffff0000, v{228+2*j}")
        a.e(f"v_mul_f32 v{t+2}, v{t+1}, v{g_+8}")
        a.e(f"v_fmac_f32 v{t+2}, v{t}, v{k_+8}")
    for j in range(2):
        t = 16 + 4 * j
        a.e(f"v_rcp_f32 v{t+2}, v{t+2}")
    a.e("s_nop 0")
    for j in range(2):
        g_, k_, t = GV + 12 * j, O + 16 * j, 16 + 4 * j
        a.e(f"v_mul_f32 v{t+2}, v{t+2}, v{t+3}")
        a.e(f"v_mul_f32 v{t+1}, v{t+1}, v{t+2}")
        a.e(f"v_mul_f32 v{t}, v{t}, v{t+2}")
        for r in range(8):
            a.e(f"v_mul_f32 v{k_+r}, v{t}, v{k_+r}")
        a.wait(lg=f"r{j+1}")
        for r in range(8):
            a.e(f"v_fmac_f32 v{k_+r}, v{t+1}, v{g_+r}")
        for r in range(4):
            a.e(f"v_cvt_pk_bf16_f32 v{24+4*j+r}, v{k_+2*r}, v{k_+2*r+1}")
        a.vmem(f"buffer_store_dwordx4 {vr(24+4*j)}, v2, s[28:31], s{73 if j == 0 else 53} offen sc1", "oa")
    pf.stamp(13)
    a.e("s_cmp_eq_u32 s55, 0")
    a.e("s_cbranch_scc1 LOB_LATE")
    a.e("s_waitcnt vmcnt(2)")
    a.e("s_branch PHASE3")
    cold.e("LOB_LATE:")
    cold.e("s_mov_b32 s78, 0")
    cold.e("LOB_L:")
    cold.e("buffer_load_dwordx2 v[244:245], v224, s[28:31], s69 offen sc1")
    cold.e("s_waitcnt vmcnt(0)")
    cold.e("v_cmp_ne_u64 vcc, s[76:77], v[244:245]")
    cold.e("s_cbranch_vccz LOB_D")
    cold.e("s_add_u32 s78, s78, 1")
    cold.e(f"s_cmp_lt_u32 s78, {SPIN}")
    cold.e("s_cbranch_scc1 LOB_L")
    cold.e("LOB_D:")
    ob_loads(cold)
    cold.e("s_waitcnt vmcnt(0)")
    cold.e("s_branch PHASE3")
    a.c("END loader")

    a.c("BEGIN gemm")
    a.e("GEMM:")
    a.vm = []
    a.lg = []
    if opt.get("cpf", 1):
        a.e("s_getpc_b64 s[88:89]")
        a.e("CPF_PC:")
        a.e(f"s_sub_u32 s88, s88, CPF_PC-{NAME}_kernel")
        a.e("s_subb_u32 s89, s89, 0")
        a.e("s_lshl_b32 s90, s48, 2")
        a.e("s_add_u32 s90, s90, s44")
        a.e("s_mul_i32 s90, s90, 320")
        a.e(f"s_min_u32 s90, s90, K_LAST-{NAME}_kernel-320")
        a.e("s_add_u32 s88, s88, s90")
        a.e("s_addc_u32 s89, s89, 0")
        for t in range(5):
            a.e(f"s_load_dword s{(91, 24, 25, 26, 27)[t]}, s[88:89], {t*64}")
    a.e("s_lshr_b32 s92, s44, 1")
    a.e("s_and_b32 s93, s44, 1")
    a.e("v_bfe_u32 v19, v1, 1, 3")
    a.e("v_xor_b32 v19, v19, v4")
    a.e("s_lshl_b32 s47, s92, 5")
    a.e("v_add_u32 v12, s47, v5")
    a.e("v_lshlrev_b32 v12, 7, v12")
    for ks in range(4):
        a.e(f"v_xor_b32 v13, {ks*2}, v19")
        a.e(f"v_lshl_add_u32 v{8+ks}, v13, 4, v12")
    a.e("v_bfe_u32 v12, v1, 2, 2")
    a.e("v_lshl_add_u32 v13, v4, 3, v12")
    a.e("v_lshlrev_b32 v13, 7, v13")
    a.e("v_bfe_u32 v14, v1, 4, 1")
    a.e("v_lshlrev_b32 v14, 1, v14")
    a.e("v_bfe_u32 v15, v1, 1, 1")
    a.e("v_add_u32 v14, v14, v15")
    a.e("v_bfe_u32 v15, v1, 3, 1")
    a.e("v_xor_b32 v15, s93, v15")
    a.e("v_lshl_add_u32 v14, v15, 2, v14")
    a.e("v_lshl_add_u32 v13, v14, 4, v13")
    a.e("v_and_b32 v15, 1, v1")
    a.e("v_lshl_add_u32 v24, v15, 3, v13")
    a.e("v_add_u32 v25, 0xc000, v24")
    a.e("v_add_u32 v26, 0x18000, v24")
    a.e("v_add_u32 v27, 0x24000, v24")
    a.e("s_lshl_b32 s10, s40, 1")
    a.e("s_add_u32 s10, s10, s92")
    a.e("s_lshl_b32 s11, s41, 1")
    a.e("s_add_u32 s11, s11, s93")
    a.e("s_lshl_b32 s82, s11, 18")
    a.e("s_lshl_b32 s83, s10, 11")
    a.e("s_add_u32 s82, s82, s83")
    a.e("s_add_u32 s83, s82, 0x20000")
    a.e("s_lshl_b32 s80, s93, 12")
    a.e("s_lshl_b32 s47, s92, 10")
    a.e("s_add_u32 s80, s80, s47")
    a.e(f"s_add_u32 s80, s80, {QX}")
    a.e("v_bfe_u32 v12, v1, 4, 1")
    a.e("v_lshlrev_b32 v12, 17, v12")
    a.e("v_lshl_add_u32 v12, v4, 8, v12")
    a.e("v_and_b32 v13, 15, v1")
    a.e("v_lshl_add_u32 v16, v13, 4, v12")
    a.e(f"s_mov_b32 s85, {QSCALE:#x}")
    a.e("s_lshl_b32 s47, s11, 6")
    a.e("s_add_u32 s47, s47, s10")
    a.e(f"s_lshl_b32 s86, s47, {FSH}")
    a.e(f"s_add_u32 s86, s86, {F_A:#x}")
    a.e(f"s_add_u32 s3, s86, {F_H-F_A:#x}")
    a.e("s_lshl_b32 s87, s47, 12")
    a.e(f"s_add_u32 s87, s87, {HALO:#x}")
    a.e("s_cmp_eq_u32 s10, 0")
    a.e("s_cselect_b32 s47, 0, 4096")
    a.e("s_sub_u32 s79, s87, s47")
    a.e("s_lshl_b32 s75, s10, 8")
    a.e(f"s_add_u32 s75, s75, {GT:#x}")
    a.e("s_mov_b64 s[94:95], 0")
    a.e(f"v_mov_b32 v42, {CTR}")
    a.e("v_mov_b32 v43, 1")
    attn_ssetup("G")
    a.e("s_waitcnt lgkmcnt(0)")
    srd(a, 28, 38, WS_BYTES)
    srd(a, 32, 36, 256)
    srd(a, 20, 8, 512 * 512 * 2)
    if opt.get("s3", 0):
        a.e("s_lshr_b32 s47, s2, 3")
        a.e("s_lshl_b32 s47, s47, 2")
        a.e("s_add_u32 s47, s47, s44")
        a.e("s_cmp_lt_u32 s47, 48")
        a.e("s_cselect_b32 s24, s6, s12")
        a.e("s_cselect_b32 s25, s7, s13")
        a.e("s_cselect_b32 s50, 0, 48")
        a.e("s_sub_u32 s50, s47, s50")
        a.e("s_lshl_b32 s50, s50, 15")
        a.e("s_add_u32 s50, s50, 384")
        a.e("s_cmp_lt_u32 s41, 3")
        a.e(f"s_cselect_b32 s26, {512*1536*2:#x}, 0")
        a.e("s_mov_b32 s27, 0x20000")
        a.e("v_lshlrev_b32 v33, 10, v5")
        a.vmem("buffer_load_dword v32, v33, s[24:27], s50 offen", "s3")
    TCH = opt.get("touch", 0)
    if TCH:
        PSH = opt.get("psh", 12)
        a.e("s_lshr_b32 s47, s2, 3")
        a.e("s_lshl_b32 s47, s47, 2")
        a.e("s_add_u32 s47, s47, s44")
        a.e(f"s_lshl_b32 s50, s47, {PSH}")
        a.e(f"v_lshlrev_b32 v33, {PSH+7}, v1")
        k_ = 0
        for bit, base, size in ((1, 12, 512 * 1536 * 2), (2, 8, 512 * 512 * 2), (2, 14, 512 * 512 * 2), (4, 38, FL + 0x80000),
                                (8, 18, 2048 * 512 * 2)):
            if TCH & bit:
                srd(a, 24, base, size)
                a.vmem(f"buffer_load_dword v{34+k_}, v33, s[24:27], s50 offen", "s3")
                k_ += 1
    a.e("s_setprio 3")

    XR, ACC, WF = 128, 80, 44

    def waddr(off):
        b = off // 49152
        return 24 + b, off - b * 49152

    def wfrag(dst, base, ks):
        L = []
        for sec in range(2):
            r, o = waddr(base + ks * 2048 + sec * 512)
            L.append(f"ds_read_b64_tr_b16 {vr(dst+sec*2,2)}, v{r} offset:{o}")
        return L

    def mf(seg, st, w):
        acc = ACC + seg * 16
        x = vr(XR + st * 4)
        cc = "0" if st == 0 else vr(acc, 16)
        if seg < 2:
            return f"v_mfma_f32_32x32x16_bf16 {vr(acc,16)}, {vr(w)}, {x}, {cc}"
        return f"v_mfma_f32_32x32x16_bf16 {vr(acc,16)}, {x}, {vr(w)}, {cc}"

    def pack(seg, half, t):
        b = ACC + seg * 16 + half * 8
        if seg == 0:
            for r in range(8):
                a.e(f"v_mul_f32 v{b+r}, s85, v{b+r}")
        for r in range(4):
            a.e(f"v_cvt_pk_bf16_f32 v{t+r}, v{b+2*r}, v{b+2*r+1}")
        return t

    def rdA(st):
        if st >= 32:
            return []
        c, ks, fs = st // 4, st % 4, WF + (st % 4) * 8
        base = (c % 3) * SLOT
        return [f"ds_read_b128 {vr(XR + st*4)}, v{8+ks} offset:{base}"] + \
            wfrag(fs, base + 8192, ks) + wfrag(fs + 4, base + 16384, ks)

    a.e("s_barrier")
    pf.stamp(2)
    for st in range(2):
        for r in rdA(st):
            a.ds(r, f"f{st}")
    for st in range(32):
        c, ks = st // 4, st % 4
        a.wait(lg=f"f{st+1}" if (ks == 2 and c < 5) else f"f{st}")
        if ks == 2 and c < 7:
            a.e("s_barrier")
            if c == 3:
                pf.stamp(3)
        fs = WF + (st % 4) * 8
        Rd = rdA(st + 2)
        a.e(mf(1, st, fs))
        for r in Rd[:3]:
            a.ds(r, f"f{st+2}")
        a.e(mf(2, st, fs + 4))
        for r in Rd[3:]:
            a.ds(r, f"f{st+2}")
    pf.stamp(4)
    a.wait(vm="s3")
    a.nop(11)
    for half in range(2):
        t = pack(1, half, 32 + half * 4)
        a.vmem(f"buffer_store_dwordx4 {vr(t)}, v2, s[28:31], s{82+half} offen sc1", "st")
    for half in range(2):
        t = pack(2, half, 8 + half * 4)
        a.vmem(f"buffer_store_dwordx4 {vr(t)}, v16, s[28:31], s82 offen offset:{1024+half*512} sc1", "st")
    tag_issue(28, 31)
    a.e("s_barrier")
    a.e("v_lshl_add_u32 v18, v1, 2, v42")
    a.e("s_mov_b64 exec, 0xff")
    a.ds("ds_write_b32 v18, v31", "ci")
    a.e("s_mov_b64 exec, -1")

    def rdQ(st):
        return wfrag(WF + (st % 9) * 4, WQ + (st // 4) * 8192, st % 4) if st < 32 else []

    for st in range(6):
        for r in rdQ(st):
            a.ds(r, f"f{st}")
    for st in range(32):
        a.wait(lg=f"f{st}")
        a.e(mf(0, st, WF + (st % 9) * 4))
        for r in rdQ(st + 6):
            a.ds(r, f"f{st+6}")
    a.e("v_add_u32 v18, s80, v2")
    a.nop(11)
    for half in range(2):
        t = pack(0, half, 32 + half * 4)
        a.ds(f"ds_write_b128 v18, {vr(t)} offset:{half*2048}", "qw")
    a.wait(lg="qw")
    a.e("s_barrier")
    q_read()
    a.e(f"s_setprio {opt.get('bprio', 3)}")

    pend = []

    def queue_wb(c):
        for it in w_items(WBR[c % 5], (0, 1, 2), 40, 24, 90, 81):
            pend.append((it, f"b{c}"))
        pend.append(None)

    def drain(n):
        while pend and n > 0:
            it = pend.pop(0)
            if it is None:
                w_adv(90)
                continue
            a.e(it[0][0])
            a.e("s_nop 0")
            a.vmem(it[0][1], it[1])
            n -= 1
        if pend and pend[0] is None:
            pend.pop(0)
            w_adv(90)

    def sbar(target, vmtag, arrive=True, sleep=0, off=0):
        uid[0] += 1
        L = f"SB{uid[0]}"
        if vmtag:
            a.wait(vm=vmtag)
        a.e("s_waitcnt lgkmcnt(0)")
        a.lg = []
        if arrive:
            sb_arrive(42, 43)
        a.e("s_mov_b32 s78, 0")
        a.e(f"{L}:")
        if sleep:
            a.e(f"s_sleep {sleep}")
        a.e(f"ds_read_b32 v32, v42 offset:{off}")
        a.e("s_add_u32 s78, s78, 1")
        a.e("s_waitcnt lgkmcnt(0)")
        a.e("v_readfirstlane_b32 s47, v32")
        a.e(f"s_cmp_ge_u32 s78, {SPIN*16}")
        a.e(f"s_cselect_b32 s50, 0, {target}")
        a.e("s_cmp_lt_u32 s47, s50")
        a.e(f"s_cbranch_scc1 {L}")
        a.lg = []

    def rdB(st):
        if st >= 32:
            return []
        c, ks, fs = st // 4, st % 4, WF + (st % 3) * 12
        return sum((wfrag(fs + seg * 4, WBR[c % 5] + seg * 8192, ks) for seg in range(3)), [])

    PISS = opt.get("piss", 19)
    pf.stamp(7)
    for st in range(2):
        for r in rdB(st):
            a.ds(r, f"f{st}")
    for st in range(32):
        if st == opt.get("flagat", 2):
            tag_check(28, 31)
            flag_store("s86", 34)
            pf.stamp(5)
        a.wait(lg=f"f{st}")
        if st in (2, 6, 10, 14, 18, opt.get("lastbar", 22)):
            a.e("s_barrier")
        if st == PISS:
            poll_issue(17, "s48", 18, "pa")
        fs = WF + (st % 3) * 12
        Rd = rdB(st + 2)
        fill = ones_init(st - 17, 30) if 17 <= st < 25 else []
        for mi in range(3):
            a.e(mf(mi, st, fs + mi * 4))
            for r in Rd[mi * 2:(mi + 1) * 2]:
                a.ds(r, f"f{st+2}")
            for t in fill[mi * 3:(mi + 1) * 3]:
                a.e(t)
        if st == opt.get("pchk", 27):
            poll_check(17, "s48", 18, "pa")
            pf.stamp(9)
            first_loads()
    sb_arrive(42, 43)
    pf.stamp(6)
    a.e(f"s_setprio {opt.get('gprio', 3)}")
    a.nop(8)
    pack(1, 0, PKB + 8)
    pack(1, 1, PKB + 12)
    pack(2, 1, PKB + 20)
    pack(2, 0, PKB + 16)
    pack(0, 0, PKB)
    pack(0, 1, PKB + 4)
    attn_vsetup("G")
    a.e(f"s_sub_u32 s88, s3, {1 << FSH}")
    a.e("s_cmp_eq_u32 s10, 0")
    a.e("s_cselect_b32 s88, s3, s88")
    NTG = 2 * NKG
    srd(a, 24, 38, WS_BYTES)

    def g_at11():
        a.wait(vm="hs")
        flag_store("s3", 228)

    def g_halo(k):
        return lambda: a.vmem(f"buffer_store_dwordx4 {vr(PKB+(8, 12, 20)[k])}, v2, s[28:31], s87 offen offset:{k*1024} sc1", "hs")

    def g_sent():
        a.e("s_lshl_b32 s89, s10, 6")
        a.e("s_lshl_b32 s47, s11, 1")
        a.e("s_add_u32 s89, s89, s47")
        a.e("s_lshl_b32 s89, s89, 10")
        a.e(f"s_add_u32 s89, s89, {OF:#x}")
        for r in range(4):
            a.e(f"v_mov_b32 v{228+r}, -1")
        a.vmem("buffer_store_dwordx4 v[228:231], v2, s[24:27], s89 offen sc1", "sn")

    def g_sent2():
        a.vmem("buffer_store_dwordx4 v[228:231], v2, s[24:27], s89 offen offset:1024 sc1", "sn")

    def g_sent_done():
        a.wait(vm="sn")
        a.e("v_mov_b32 v228, 1")
        a.e("v_cndmask_b32 v228, v228, 0, s[94:95]")
        sb_arrive(224, 228)

    def g_hpoll():
        a.e("v_mov_b32 v230, 0")
        poll_issue(230, "s88", 228, "hp")

    def g_hload():
        poll_check(230, "s88", 228, "hp")
        for t in range(3):
            a.vmem(f"buffer_load_dwordx4 {vr(128+4*t)}, v2, s[28:31], s79 offen offset:{t*1024} sc1", "hl")
        poll_issue(225, "s75", 228, "gl")

    assert NKG % 8 == 0
    H0, HS = opt.get("h0", 6), opt.get("hstep", 4)
    hooks = {1: [lambda: a.ds("ds_read_b32 v228, v224", "s5")], 3: [lambda: lds_check(224, 228, 4, "s5")],
             H0: [g_halo(0)], H0 + HS: [g_halo(1)], H0 + 2 * HS: [g_halo(2)], H0 + 3 * HS: [g_sent], H0 + 4 * HS: [g_sent2],
             H0 + 4 * HS + 12: [g_at11, g_sent_done], NTG - opt.get("hp1", 13): [g_hpoll], NTG - opt.get("hp2", 7): [g_hload]}
    if WT == 1:
        hooks.setdefault(5, []).append(lambda: wo_touch(None, 230))
    if WT == 2:
        hooks.setdefault(1, []).append(lambda: wo_touch(0, 230))
        hooks.setdefault(5, []).append(lambda: wo_touch(1, 231))
    wo_at = [n for n in range(17 if WT else 5, NTG - opt.get("hp1", 13) - 1) if n % 2 == 1]
    step_ = len(wo_at) / 16.0
    for k_ in range(16):
        hooks.setdefault(wo_at[int(k_ * step_)], []).append(wo_issue)
    if opt.get("saw", 1):
        gs = {1: (2, 2), 2: (4, 4), 3: (1, 2), 4: (3, 2)}[opt.get("saw", 1)]
        n_, g_ = 0, 0
        while n_ < NTG:
            hooks.setdefault(n_, []).append(lambda v_=3 - g_ % 4: a.e(f"s_setprio {v_}"))
            n_ += gs[g_ % 2]
            g_ += 1
    else:
        for k_, v_ in ((opt.get("g2", 36), 2), (opt.get("g1", 56), 1)):
            hooks.setdefault(k_, []).append(lambda v_=v_: a.e(f"s_setprio {v_}"))
    attn_main("G", hooks)
    a.e("s_setprio 3")
    a.e("s_mul_i32 s47, s44, 5120")
    a.e(f"s_add_u32 s47, s47, {CMB}")
    a.e("v_add_u32 v8, s47, v2")
    a.e("v_lshlrev_b32 v9, 3, v1")
    a.e("v_add_u32 v9, s47, v9")
    for j in range(2):
        a.ds(f"ds_write_b128 v8, {vr(O+16*j)} offset:{j*2560}", "w")
        a.ds(f"ds_write_b128 v8, {vr(O+16*j+4)} offset:{j*2560+1024}", "w")
        a.ds(f"ds_write_b64 v9, {vr(O+16*j+8,2)} offset:{j*2560+2048}", "w")
    a.e("s_lshl_b32 s47, s44, 2")
    a.e(f"s_add_u32 s47, s47, {CTR+16}")
    a.e("v_mov_b32 v14, s47")
    a.e("v_mov_b32 v15, 1")
    a.ds("ds_write_b32 v14, v15", "w")

    HK, HV = 128, 136
    if opt.get("la2", 1):
        SCs, SPs = [144, 176], [160, 192]
        for hh in range(2):
            a.e(f"v_mfma_f32_32x32x16_bf16 {vr(SCs[hh],16)}, {vr(PKB+8+4*hh)}, {vr(PKB+4*hh)}, 0")
        a.wait(vm=["hl", "gl"])
        for hh in range(2):
            a.e(f"v_mfma_f32_32x32x16_bf16 {vr(SPs[hh],16)}, {vr(HK+4*hh)}, {vr(PKB+4*hh)}, 0")
        poll_check(225, "s75", 228, "none", gate=True)
        a.e("v_lshlrev_b32 v228, 16, v228")
        a.e("s_lshl_b32 s80, s10, 6")
        a.e("s_lshl_b32 s47, s11, 1")
        a.e("s_add_u32 s80, s80, s47")
        a.e("s_add_u32 s80, s80, 32")
        a.e("s_lshl_b32 s80, s80, 10")
        a.e(f"s_add_u32 s80, s80, {OF:#x}")
        a.e("s_lshl_b32 s81, s10, 4")
        a.e("s_add_u32 s81, s81, s11")
        a.e(f"s_lshl_b32 s81, s81, {FSH}")
        a.e(f"s_add_u32 s81, s81, {F_OB:#x}")
        a.e("s_cmp_eq_u32 s10, 0")
        a.e("s_cselect_b32 s90, 0, -1")
        SL = [80, 88]
        for hh in range(2):
            for k_ in range(4):
                a.e(f"v_mov_b32 v{SL[hh]+k_}, {NEGBIG:#x}")
        a.e("v_and_b32 v10, 1, v1")
        a.e("v_lshlrev_b32 v10, 4, v10")
        a.e("v_mov_b32 v11, 0xffff")
        a.e("v_lshlrev_b32 v10, v10, v11")

        def lane_mask(r, prev):
            m = 0
            for l in range(64):
                d = (l & 31) + (32 if prev else 0) - ((r & 3) + 8 * (r >> 2) + 4 * (l >> 5))
                if 0 <= d <= 14 and d % 2 == 0:
                    m |= 1 << l
            return m

        def set_vcc(m, prev):
            for nm, w in (("vcc_lo", m & 0xffffffff), ("vcc_hi", m >> 32)):
                a.e(f"s_and_b32 {nm}, {w:#x}, s90" if prev else f"s_mov_b32 {nm}, {w:#x}")

        cand = [(r, False) for r in range(16)] + [(r, True) for r in range(8, 16)]

        def slot(r):
            return ((r >> 2) & 1) * 2 + ((r & 3) >> 1)
        for r, prev in cand:
            set_vcc(lane_mask(r, prev), prev)
            for hh in range(2):
                src = (SPs if prev else SCs)[hh] + r
                a.e(f"v_cndmask_b32 v{SL[hh]+slot(r)}, v{SL[hh]+slot(r)}, v{src}, vcc")
        for hh in range(2):
            b = SL[hh]
            a.e(f"v_max3_f32 v{b+4}, v{b}, v{b+1}, v{b+2}")
            a.e(f"v_max_f32 v{b+4}, v{b+4}, v{b+3}")
            a.e(f"v_mov_b32 v{b+5}, v{b+4}")
        a.nop(1)
        for hh in range(2):
            a.e(f"v_permlane32_swap_b32 v{SL[hh]+4}, v{SL[hh]+5}")
        a.nop(1)
        for hh in range(2):
            b = SL[hh]
            a.e(f"v_max_f32 v{b+4}, v{b+4}, v{b+5}")
            for k_ in range(4):
                a.e(f"v_sub_f32 v{b+k_}, v{b+k_}, v{b+4}")
            for k_ in range(4):
                a.e(f"v_exp_f32 v{b+k_}, v{b+k_}")
        for hh in range(2):
            b = SL[hh]
            a.e(f"v_add_f32 v{b+4}, v{b}, v{b+1}")
            a.e(f"v_add_f32 v{b+5}, v{b+2}, v{b+3}")
            a.e(f"v_add_f32 v{b+4}, v{b+4}, v{b+5}")
            a.e(f"v_mov_b32 v{b+5}, v{b+4}")
        a.nop(1)
        for hh in range(2):
            a.e(f"v_permlane32_swap_b32 v{SL[hh]+4}, v{SL[hh]+5}")
        a.nop(1)
        for hh in range(2):
            a.e(f"v_add_f32 v{SL[hh]+4}, v{SL[hh]+4}, v{SL[hh]+5}")
        for hh in range(2):
            a.e(f"v_rcp_f32 v{SL[hh]+4}, v{SL[hh]+4}")
        a.e("s_nop 0")
        for hh in range(2):
            b = SL[hh]
            if opt.get("foldg", 0):
                a.e(f"v_mul_f32 v{b+4}, v{b+4}, v228")
            for k_ in range(4):
                a.e(f"v_mul_f32 v{b+k_}, v{b+k_}, v{b+4}")
            for k_ in range(4):
                a.e(f"v_cvt_pk_bf16_f32 v{b+k_}, v{b+k_}, v{b+k_}")
            for k_ in range(4):
                a.e(f"v_and_b32 v{b+k_}, v{b+k_}, v10")
        LP = [96, 108]
        LO = [48, 64]
        for i in range(12):
            (r, prev) = cand[2 * i]
            set_vcc(lane_mask(r, prev) | lane_mask(r + 1, prev), prev)
            for hh in range(2):
                a.e(f"v_cndmask_b32 v{LP[hh]+i}, 0, v{SL[hh]+slot(r)}, vcc")
        a.wait(lg="w")
        a.nop(1)
        for i, va in enumerate((PKB + 16, PKB + 20, HV)):
            for hh in range(2):
                cc = "0" if i == 0 else vr(LO[hh], 16)
                a.e(f"v_mfma_f32_32x32x16_bf16 {vr(LO[hh],16)}, {vr(va)}, {vr(LP[hh]+4*i)}, {cc}")
        wo_addr()
        for hh in range(2):
            o = LO[hh] + 8 * hh
            if not opt.get("foldg", 0):
                for r in range(8):
                    a.e(f"v_mul_f32 v{o+r}, v228, v{o+r}")
            for r in range(4):
                a.e(f"v_cvt_pk_bf16_f32 v{208+4*hh+r}, v{o+2*r}, v{o+2*r+1}")
            a.vmem(f"buffer_store_dwordx4 {vr(208+4*hh)}, v2, s[28:31], s80 offen offset:{hh*1024} sc1", "ob")
    else:
        MC, MP = 80, 96
        a.e("v_lshlrev_b32 v10, 2, v4")
        a.e("v_sub_u32 v10, v5, v10")
        a.e("v_add_u32 v10, 18, v10")
        a.e("v_mov_b32 v12, 0x5555")
        a.e("v_mov_b32 v13, 0")
        a.e("v_lshlrev_b64 v[12:13], v10, v[12:13]")
        a.e("v_not_b32 v12, v12")
        a.e("v_not_b32 v13, v13")
        a.e("s_cmp_eq_u32 s10, 0")
        a.e("s_cselect_b32 s47, -1, 0")
        a.e("v_or_b32 v12, s47, v12")
        a.e(f"s_mov_b32 s47, {NEGBIG:#x}")
        for r in range(16):
            cbit = (r & 3) + 8 * (r >> 2)
            a.e(f"v_bfe_i32 v{MC+r}, v13, {cbit}, 1")
            a.e(f"v_and_b32 v{MC+r}, s47, v{MC+r}")
        SCs, SPs = [144, 176], [160, 192]
        a.nop(2)
        for hh in range(2):
            a.e(f"v_mfma_f32_32x32x16_bf16 {vr(SCs[hh],16)}, {vr(PKB+8+4*hh)}, {vr(PKB+4*hh)}, {vr(MC,16)}")
        for r in range(8, 16):
            cbit = (r & 3) + 8 * (r >> 2)
            a.e(f"v_bfe_i32 v{MP+r}, v12, {cbit}, 1")
            a.e(f"v_and_b32 v{MP+r}, s47, v{MP+r}")
        ONES = 140
        for r in range(4):
            a.e(f"v_mov_b32 v{ONES+r}, 0x3f803f80")
        a.wait(vm=["hl", "gl"])
        for hh in range(2):
            a.e(f"v_mfma_f32_32x32x16_bf16 {vr(SPs[hh],16)}, {vr(HK+4*hh)}, {vr(PKB+4*hh)}, {vr(MP,16)}")
        poll_check(225, "s75", 228, "none", gate=True)
        a.e("v_lshlrev_b32 v228, 16, v228")
        a.e("s_lshl_b32 s80, s10, 6")
        a.e("s_lshl_b32 s47, s11, 1")
        a.e("s_add_u32 s80, s80, s47")
        a.e("s_add_u32 s80, s80, 32")
        a.e("s_lshl_b32 s80, s80, 10")
        a.e(f"s_add_u32 s80, s80, {OF:#x}")
        a.e("s_lshl_b32 s81, s10, 4")
        a.e("s_add_u32 s81, s81, s11")
        a.e(f"s_lshl_b32 s81, s81, {FSH}")
        a.e(f"s_add_u32 s81, s81, {F_OB:#x}")
        LP = [32, 112]
        LO = [48, 64]
        LS = [80, 96]
        a.wait(lg="w")
        for hh in range(2):
            vals = [SCs[hh] + r for r in range(16)] + [SPs[hh] + 8 + r for r in range(8)]
            a.e(f"v_max3_f32 v10, v{vals[0]}, v{vals[1]}, v{vals[2]}")
            for i in range(3, 23, 2):
                a.e(f"v_max3_f32 v10, v10, v{vals[i]}, v{vals[i+1]}")
            a.e(f"v_max_f32 v10, v10, v{vals[23]}")
            a.e("v_mov_b32 v11, v10")
            a.nop(2)
            a.e("v_permlane32_swap_b32 v10, v11")
            a.nop(2)
            a.e("v_max_f32 v10, v10, v11")
            for v in vals:
                a.e(f"v_sub_f32 v{v}, v{v}, v10")
            for v in vals:
                a.e(f"v_exp_f32 v{v}, v{v}")
            a.e("s_nop 0")
            for i in range(12):
                a.e(f"v_cvt_pk_bf16_f32 v{LP[hh]+i}, v{vals[2*i]}, v{vals[2*i+1]}")
            a.nop(2)
            for i, va in enumerate((PKB + 16, PKB + 20, HV)):
                cc = "0" if i == 0 else vr(LO[hh], 16)
                a.e(f"v_mfma_f32_32x32x16_bf16 {vr(LO[hh],16)}, {vr(va)}, {vr(LP[hh]+4*i)}, {cc}")
            for i in range(3):
                cc = "0" if i == 0 else vr(LS[hh], 16)
                a.e(f"v_mfma_f32_32x32x16_bf16 {vr(LS[hh],16)}, {vr(ONES)}, {vr(LP[hh]+4*i)}, {cc}")
        for hh in range(2):
            a.e(f"v_rcp_f32 v10, v{LS[hh]}")
            a.e("s_nop 0")
            a.e("v_mul_f32 v10, v10, v228")
            o = LO[hh] + 8 * hh
            for r in range(8):
                a.e(f"v_mul_f32 v{o+r}, v10, v{o+r}")
            for r in range(4):
                a.e(f"v_cvt_pk_bf16_f32 v{208+4*hh+r}, v{o+2*r}, v{o+2*r+1}")
            a.vmem(f"buffer_store_dwordx4 {vr(208+4*hh)}, v2, s[28:31], s80 offen offset:{hh*1024} sc1", "ob")
        wo_addr()
    a.wait(vm="ob")
    flag_store("s81", 12)
    pf.stamp(8)
    a.e("s_setprio 0")
    poll_inline(224, "s69", 244, sleep=4)
    ob_loads(a)
    a.e("s_waitcnt vmcnt(0)")
    pf.stamp(13)
    a.e("s_setprio 3")
    a.c("END gemm")

    a.e("PHASE3:")
    a.vm = []
    a.lg = []
    A3 = 48
    OBF, OAF = 152, 80
    W3 = [184]

    def wslot(t):
        return W3[0] + ((t % 4) if W3[0] == 184 else t) * 8

    def wreads(t, base):
        for j in range(2):
            for sec in range(2):
                a.ds(f"ds_read_b64_tr_b16 {vr(wslot(t)+j*4+sec*2,2)}, v{base+j} offset:{t*2048+sec*1024}", f"w{t}")

    def mm3(t, of, first):
        for j in range(2):
            cc = "0" if first else vr(A3 + 16 * j, 16)
            a.e(f"v_mfma_f32_32x32x16_bf16 {vr(A3+16*j,16)}, {vr(wslot(t)+j*4)}, {vr(of+4*t)}, {cc}")

    def oa_load(t, asm):
        return f"buffer_load_dwordx4 {vr(OAF+4*t)}, v2, s[28:31], s{67 if t < 4 else 70} offen offset:{(t&3)*1024} sc1"

    a.e("s_barrier")
    if opt.get("tailp"):
        pf.stamp(2)
    for t in range(3):
        wreads(t, 234)
    for t in range(8):
        a.wait(lg=f"w{t}")
        mm3(t, OBF, t == 0)
        if t + 3 < 8:
            wreads(t + 3, 234)
        if t == opt.get("oaat", 6):
            for u in range(8):
                a.vmem(oa_load(u, a), f"oa{u}")
    W3[0] = 128
    a.e("s_barrier")
    if opt.get("tailp"):
        pf.stamp(3)
    for t in range(8):
        if t >= 3:
            a.wait(lg=f"w{t-3}")
        wreads(t, 232)
    srd(a, 32, 18, 2048 * 512 * 2)
    for t in range(1, 4):
        a.e(f"s_xor_b32 s47, s63, {2*t}")
        a.e("s_mul_i32 s47, s47, 6144")
        a.e(f"s_add_u32 s47, s47, {RED + (t-1)*2048}")
        a.e(f"v_add_u32 v{8+t}, s47, v2")
    a.e("s_mul_i32 s47, s63, 6144")
    a.e(f"s_add_u32 s47, s47, {RED}")
    a.e("v_add_u32 v8, s47, v2")
    a.e("v_lshlrev_b32 v12, 10, v5")
    a.e("v_lshl_add_u32 v12, v4, 5, v12")
    a.wait(lg="w7")
    for t in range(8):
        o = OAF + 4 * t
        a.wait(vm=f"oa{t}")
        a.e(f"v_max3_u32 v13, v{o}, v{o+1}, v{o+2}")
        a.e(f"v_max_u32 v13, v13, v{o+3}")
        a.e("v_cmp_eq_u32 vcc, -1, v13")
        a.e(f"s_cbranch_vccnz OA{t}_S")
        a.e(f"OA{t}_D:")
        mm3(t, OAF, False)
        cold.e(f"OA{t}_S:")
        cold.e("s_mov_b32 s78, 0")
        cold.e(f"OA{t}:")
        for u in range(t, 8):
            cold.e(oa_load(u, cold))
        cold.e(f"s_waitcnt vmcnt({7-t})")
        cold.e(f"v_max3_u32 v13, v{o}, v{o+1}, v{o+2}")
        cold.e(f"v_max_u32 v13, v13, v{o+3}")
        cold.e("v_cmp_eq_u32 vcc, -1, v13")
        cold.e(f"s_cbranch_vccz OA{t}_D")
        spin_tail(f"OA{t}", f"OA{t}_D")
    if opt.get("tailp"):
        pf.stamp(4)
    a.nop(11)
    for t in (1, 2, 3):
        a.ds(f"ds_write_b128 v{8+t}, {vr(A3+8*t)}", "w")
        a.ds(f"ds_write_b128 v{8+t}, {vr(A3+8*t+4)} offset:1024", "w")
    a.wait(lg="w")
    a.e("s_barrier")
    if opt.get("tailp"):
        pf.stamp(5)
    for t in range(3):
        a.ds(f"ds_read_b128 {vr(192+8*t)}, v8 offset:{t*2048}", f"r{t}")
        a.ds(f"ds_read_b128 {vr(196+8*t)}, v8 offset:{t*2048+1024}", f"r{t}")
    for t in range(3):
        a.wait(lg=f"r{t}")
        for r in range(8):
            a.e(f"v_add_f32 v{A3+r}, v{A3+r}, v{192+8*t+r}")
    for r in range(4):
        a.e(f"v_cvt_pk_bf16_f32 v{112+r}, v{A3+2*r}, v{A3+2*r+1}")
    a.e(f"buffer_store_dwordx4 v[112:115], v12, s[32:35], s72 offen{' sc1' if opt.get('outsc1', 0) else ''}")
    if opt.get("padto"):
        a.e("PADL:")
        a.e("s_memrealtime s[98:99]")
        a.e("s_waitcnt lgkmcnt(0)")
        a.e("s_sub_u32 s98, s98, s76")
        a.e(f"s_cmp_lt_u32 s98, {opt['padto']}")
        a.e("s_cbranch_scc1 PADL")
    pf.finish()
    a.e("K_END:")
    a.e("s_endpgm")
    a.c("BEGIN slow")
    a.lines += cold.lines
    a.c("END slow")
    a.e("K_LAST:")
    a.e("s_endpgm")
    return a


DOC = """;
"""


def build(opt=None):
    opt = opt or {}
    ref = open(os.path.join(os.path.dirname(__file__), "..", "cdna_kernels", NAME + ".s.ref")).read()
    head = [l for l in ref.splitlines() if l.startswith(";") and "@launch" not in l]
    out = "\n".join(head) + "\n"
    out += "; @launch grid=(256,1,1) block=(512,1,1) lds=163840\n"
    out += DOC
    out += '.amdgcn_target "amdgcn-amd-amdhsa--gfx950"\n'
    a = gen(opt)
    probs = a.check("k", {"L": {"gemm", "slow"}, "G": {"loader", "slow"}})
    for p in probs:
        print("HAZARD", p)
    out += header(NAME + "_kernel") + a.text()
    out += descriptor(NAME + "_kernel", 256, 102)
    return out, not probs


if __name__ == "__main__":
    opt = {}
    dst = os.path.join(os.path.dirname(__file__), "..", "cdna_kernels", NAME + ".s")
    for arg in sys.argv[1:]:
        if "=" in arg:
            k, v = arg.split("=")
            opt[k] = int(v)
        else:
            dst = arg
    txt, ok = build(opt)
    open(dst, "w").write(txt)
    print("wrote", dst, len(txt), "bytes", "hazards OK" if ok else "HAZARDS FOUND")
```
